```python
import torch

def _softmax(x, axis=-1):
    return torch.softmax(x, dim=axis)
def _gelu(x):
    return torch.nn.functional.gelu(x, approximate="tanh")
def _silu(x):
    return torch.nn.functional.silu(x)
def _sigmoid(x):
    return torch.sigmoid(x)
def _layernorm(x, axis=-1, eps=1e-5):
    m = x.mean(dim=axis, keepdim=True)
    v = x.var(dim=axis, keepdim=True, unbiased=False)
    return (x - m) / torch.sqrt(v + eps)
def _scatter_add(tgt, idx, src, axis=0):
    return tgt.clone().index_add_(axis, idx, src)
def _segment_sum(src, seg, n):
    out = torch.zeros((n,) + src.shape[1:], dtype=src.dtype)
    return out.index_add_(0, seg, src)
def _pad(x, pw):
    flat = tuple(v for pair in reversed(pw) for v in pair)
    return torch.nn.functional.pad(x, flat)

kernel_name = 'recurrent_scan__spectral_fnet__mixer_channel_mlp__prompt'

def setup_inputs():

    _w = (lambda a: (lambda t: t.to(torch.bfloat16) if t.is_floating_point() else t)(torch.as_tensor(a)))
    def _A_setup():
        B, S, D = 1, 2048, 576
        ns = torch.arange(S)[:, None] * torch.arange(S)[None, :]
        nd = torch.arange(D)[:, None] * torch.arange(D)[None, :]
        Ws_re = torch.cos(-2.0 * torch.pi * ns / S).to(float)
        Ws_im = torch.sin(-2.0 * torch.pi * ns / S).to(float)
        Wd_re = torch.cos(-2.0 * torch.pi * nd / D).to(float)
        Wd_im = torch.sin(-2.0 * torch.pi * nd / D).to(float)
        return {
            "x": _w((lambda *s: torch.randn(*s, dtype=torch.bfloat16) * 0.05)(B, S, D)),
            "dft_seq_re": _w(Ws_re),
            "dft_seq_im": _w(Ws_im),
            "dft_hid_re": _w(Wd_re),
            "dft_hid_im": _w(Wd_im),
        }
    _A_in = _A_setup()

    def _B_setup():
        B, S, D, F = 1, 2048, 576, 4608
        return {
            "x": _w((lambda *s: torch.randn(*s, dtype=torch.bfloat16) * 0.05)(B, S, D)),
            "w1": _w((lambda *s: torch.randn(*s, dtype=torch.bfloat16) * 0.8)(D, F) * (D ** -0.5)),
            "b1": _w((lambda *s: torch.randn(*s, dtype=torch.bfloat16) * 0.8)(F)),
            "w2": _w((lambda *s: torch.randn(*s, dtype=torch.bfloat16) * 0.05)(F, D) * (F ** -0.5)),
            "b2": _w((lambda *s: torch.randn(*s, dtype=torch.bfloat16) * 0.05)(D)),
        }
    _B_in = _B_setup()

    return {
        "A_x": _A_in["x"],
        "A_dft_seq_re": _A_in["dft_seq_re"],
        "A_dft_seq_im": _A_in["dft_seq_im"],
        "A_dft_hid_re": _A_in["dft_hid_re"],
        "A_dft_hid_im": _A_in["dft_hid_im"],
        "B_x": _B_in["x"],
        "B_w1": _B_in["w1"],
        "B_b1": _B_in["b1"],
        "B_w2": _B_in["w2"],
        "B_b2": _B_in["b2"],
    }

def reference(A_x, A_dft_seq_re, A_dft_seq_im, A_dft_hid_re, A_dft_hid_im, B_x, B_w1, B_b1, B_w2, B_b2):
    def _A_ref(x, dft_seq_re, dft_seq_im, dft_hid_re, dft_hid_im):
        a = torch.einsum("bsd,ed->bse", x, dft_hid_re)
        b = torch.einsum("bsd,ed->bse", x, dft_hid_im)
        y = torch.einsum("ts,bse->bte", dft_seq_re, a) - torch.einsum("ts,bse->bte", dft_seq_im, b)
        return y

    def _B_ref(x, w1, b1, w2, b2):
        y = _layernorm(x, axis=-1)
        h = _gelu(torch.einsum("bsd,df->bsf", y, w1) + b1)
        return torch.einsum("bsf,fd->bsd", h, w2) + b2

    x = A_x
    xn = _layernorm(x, axis=-1)
    s = _A_ref(xn, A_dft_seq_re, A_dft_seq_im, A_dft_hid_re, A_dft_hid_im)
    g = _silu(_B_ref(xn, B_w1, B_b1, B_w2, B_b2))
    return x + s * g
```

```python
SZ = 2048*576*2
XN = 0
Y = SZ
A = 2*SZ
B = 3*SZ
H = 4*SZ
HSZ = 2048*4608*2
P0 = H + HSZ
PSZ = 2048*576*4
def cmp_partials(cmp, ws_bf16, ws_f32, sre, sim, mlo, mhi):
    for i, (n, w) in enumerate([("sre", sre), ("sim", sim), ("mlo", mlo), ("mhi", mhi)]):
        cmp(n, ws_f32(P0 + i*PSZ, (2048, 576)), w)
```

```python
import sys, re
import layout as LY

NAME = "recurrent_scan__spectral_fnet__mixer_channel_mlp__prompt"

class Asm:
    def __init__(self):
        self.lines = []
        self.uid = 0
    def __call__(self, s):
        m = re.match(r"s_cselect_b32 (s\d+), (-?\d+), (-?\d+)$", s)
        if m and not (-16 <= int(m.group(2)) <= 64) and not (-16 <= int(m.group(3)) <= 64):
            self.lines.append(f"    s_mov_b32 {m.group(1)}, {m.group(3)}")
            self.lines.append(f"    s_cselect_b32 {m.group(1)}, {m.group(2)}, {m.group(1)}")
            return
        self.lines.append("    " + s)
    def label(self, l):
        self.lines.append(l + ":")
    def raw(self, s):
        self.lines.append(s)
    def c(self, s):
        self.lines.append("    ; " + s)
    def newlabel(self, p):
        self.uid += 1
        return f"L_{p}_{self.uid}"

def vr(b, n=1):
    return f"v{b}" if n == 1 else f"v[{b}:{b+n-1}]"
def sr(b, n=1):
    return f"s{b}" if n == 1 else f"s[{b}:{b+n-1}]"

def srd(a, d, base_lo, base_hi, nbytes, off=0):
    if off:
        a(f"s_add_u32 s{d}, s{base_lo}, {off}")
        a(f"s_addc_u32 s{d+1}, s{base_hi}, 0")
    else:
        a(f"s_mov_b32 s{d}, s{base_lo}")
        a(f"s_mov_b32 s{d+1}, s{base_hi}")
    a(f"s_mov_b32 s{d+2}, {nbytes}")
    a(f"s_mov_b32 s{d+3}, 0x00020000")

def kernel_header(a, name):
    a.raw(".text")
    a.raw(f".globl {name}")
    a.raw(".p2align 8")
    a.raw(f".type {name},@function")
    a.label(name)

def kernel_desc(name, vgpr, sgpr=96):
    acc = (vgpr + 3) // 4 * 4
    return f""".section .rodata,"a"
.p2align 6
.amdhsa_kernel {name}
  .amdhsa_next_free_vgpr {vgpr}
  .amdhsa_next_free_sgpr {sgpr}
  .amdhsa_accum_offset {acc}
  .amdhsa_group_segment_fixed_size 0
  .amdhsa_kernarg_size 104
  .amdhsa_user_sgpr_count 2
  .amdhsa_user_sgpr_kernarg_segment_ptr 1
  .amdhsa_system_sgpr_workgroup_id_x 1
.end_amdhsa_kernel
"""

class LdsQ:
    def __init__(self, a):
        self.a = a
        self.q = []
        self.done = 0
    def issue(self, tag, text):
        self.a(text)
        self.q.append(tag)
    def need(self, tags):
        idx = -1
        for t in tags:
            for p in range(len(self.q) - 1, -1, -1):
                if self.q[p] == t:
                    idx = max(idx, p)
                    break
            else:
                raise Exception(f"tag {t} never issued")
        if idx < self.done:
            return
        n = len(self.q) - 1 - idx
        n = min(n, 15)
        self.a(f"s_waitcnt lgkmcnt({n})")
        self.done = len(self.q) - n

def gen_ln(a):
    name = "ln_kernel"
    kernel_header(a, name)
    a("s_cmp_ge_u32 s2, 256")
    a("s_cbranch_scc1 L_ln_done")
    a("s_load_dwordx2 s[4:5], s[0:1], 0")
    a("s_load_dwordx2 s[6:7], s[0:1], 96")
    a("v_lshrrev_b32 v1, 5, v0")
    a("s_lshl_b32 s3, s2, 3")
    a("v_add_u32 v1, s3, v1")
    a("v_and_b32 v2, 31, v0")
    a("v_mul_u32_u24 v1, 1152, v1")
    a("v_lshl_add_u32 v1, v2, 2, v1")
    a("s_waitcnt lgkmcnt(0)")
    srd(a, 8, 4, 5, LY.SZ)
    srd(a, 12, 6, 7, 2 * LY.SZ)
    P = 10
    F = 20
    for j in range(9):
        a(f"buffer_load_dword v{P+j}, v1, s[8:11], 0 offen offset:{j*128}")
    a("s_mov_b32 s16, 0xffff0000")
    a("s_mov_b32 s17, 0x3ae38e39")
    a("s_mov_b32 s18, 0x3727c5ac")
    a("s_waitcnt vmcnt(0)")
    for j in range(9):
        a(f"v_lshlrev_b32 v{F+2*j}, 16, v{P+j}")
        a(f"v_and_b32 v{F+2*j+1}, s16, v{P+j}")
    S, T, M, D, R, Q, E = 40, 41, 42, 43, 44, 45, 46
    G = 50
    def reduce32(v):
        for sh in (8, 4, 2, 1):
            a("s_nop 1")
            a(f"v_add_f32_dpp v{v}, v{v}, v{v} row_ror:{sh} row_mask:0xf bank_mask:0xf")
        a(f"ds_swizzle_b32 v{T}, v{v} offset:0x401F")
        a("s_waitcnt lgkmcnt(0)")
        a(f"v_add_f32 v{v}, v{v}, v{T}")
    def rbf(v):
        a(f"v_cvt_pk_bf16_f32 v{v}, v{v}, v{v}")
        a(f"v_lshlrev_b32 v{v}, 16, v{v}")
    def ln(outoff):
        a(f"v_add_f32 v{S}, v{F}, v{F+1}")
        for i in range(2, 18):
            a(f"v_add_f32 v{S}, v{S}, v{F+i}")
        reduce32(S)
        a(f"v_mul_f32 v{M}, s17, v{S}")
        for i in range(18):
            a(f"v_sub_f32 v{G+i}, v{F+i}, v{M}")
        a(f"v_mul_f32 v{S}, v{G}, v{G}")
        for i in range(1, 18):
            a(f"v_fmac_f32 v{S}, v{G+i}, v{G+i}")
        reduce32(S)
        a(f"v_mul_f32 v{D}, s17, v{S}")
        rbf(D)
        a(f"v_add_f32 v{D}, s18, v{D}")
        rbf(D)
        a(f"v_sqrt_f32 v{D}, v{D}")
        a("s_nop 0")
        rbf(D)
        rbf(M)
        a(f"v_rcp_f32 v{R}, v{D}")
        for i in range(18):
            a(f"v_sub_f32 v{G+i}, v{F+i}, v{M}")
        for j in range(9):
            a(f"v_cvt_pk_bf16_f32 v{P+j}, v{G+2*j}, v{G+2*j+1}")
            a(f"v_lshlrev_b32 v{G+2*j}, 16, v{P+j}")
            a(f"v_and_b32 v{G+2*j+1}, s16, v{P+j}")
        for i in range(18):
            a(f"v_mul_f32 v{Q}, v{G+i}, v{R}")
            a(f"v_fma_f32 v{E}, -v{Q}, v{D}, v{G+i}")
            a(f"v_fma_f32 v{F+i}, v{E}, v{R}, v{Q}")
        for j in range(9):
            a(f"v_cvt_pk_bf16_f32 v{P+j}, v{F+2*j}, v{F+2*j+1}")
            a(f"v_lshlrev_b32 v{F+2*j}, 16, v{P+j}")
            a(f"v_and_b32 v{F+2*j+1}, s16, v{P+j}")
        a(f"s_mov_b32 s19, {outoff}")
        for j in range(9):
            a(f"buffer_store_dword v{P+j}, v1, s[12:15], s19 offen offset:{j*128}")
    ln(LY.XN)
    a("s_nop 1")
    ln(LY.Y)
    a.label("L_ln_done")
    a("s_endpgm")
    return kernel_desc(name, 72)

K1_S = 28672
K1_R = 5
K1_N = 18
def gen_k1(a):
    name = "gemm1_kernel"
    kernel_header(a, name)
    a("s_cmp_ge_u32 s2, 240")
    a("s_cbranch_scc1 L_k1_done")
    a("s_load_dwordx4 s[4:7], s[0:1], 24")
    a("s_load_dwordx4 s[8:11], s[0:1], 48")
    a("s_load_dwordx2 s[12:13], s[0:1], 96")
    a("v_lshrrev_b32 v1, 6, v0")
    a("v_and_b32 v2, 63, v0")
    a("s_and_b32 s33, s2, 7")
    a("s_lshr_b32 s34, s2, 3")
    a("v_readfirstlane_b32 s32, v1")
    a("s_lshl_b32 s33, s33, 8")
    a("s_waitcnt lgkmcnt(0)")
    a("s_cmp_ge_u32 s34, 24")
    a("s_cbranch_scc1 L_k1_nt")
    gen_k1_path(a, False)
    a.label("L_k1_nt")
    gen_k1_path(a, True)
    a.label("L_k1_done")
    a("s_endpgm")
    return kernel_desc(name, 256)

def gen_k1_path(a, nt):
    tg = "nt" if nt else "nn"
    SA, SB, SO, SBI = 16, 20, 24, 28
    if nt:
        srd(a, SA, 12, 13, LY.SZ, LY.XN)
        a("s_sub_u32 s34, s34, 24")
        a("s_cmp_ge_u32 s34, 3")
        a("s_cselect_b32 s20, s6, s4")
        a("s_cselect_b32 s21, s7, s5")
        a(f"s_mov_b32 s22, {576*576*2}")
        a("s_mov_b32 s23, 0x00020000")
        a(f"s_cselect_b32 s35, {LY.B}, {LY.A}")
        a("s_add_u32 s24, s12, s35")
        a("s_addc_u32 s25, s13, 0")
        a(f"s_mov_b32 s26, {LY.SZ}")
        a("s_mov_b32 s27, 0x00020000")
        a("s_cmp_ge_u32 s34, 3")
        a("s_cselect_b32 s35, 3, 0")
        a("s_sub_u32 s34, s34, s35")
        a("s_mul_i32 s34, s34, 192")
        ldo = 1152
    else:
        srd(a, SA, 12, 13, LY.SZ, LY.Y)
        srd(a, SB, 8, 9, 576 * 4608 * 2)
        srd(a, SO, 12, 13, LY.HSZ, LY.H)
        srd(a, SBI, 10, 11, 4608 * 2)
        a("s_mul_i32 s34, s34, 192")
        ldo = 9216
    a("s_cmp_ge_u32 s32, 4")
    a(f"s_cbranch_scc1 L_k1_{tg}_loader")
    ACC = 64
    FA = 8
    FB = 24
    AA0, AA1, AB0, AB1 = 48, 49, 50, 51
    a("s_lshr_b32 s36, s32, 1")
    a("s_and_b32 s37, s32, 1")
    a("v_and_b32 v3, 31, v2")
    a("v_lshrrev_b32 v4, 5, v2")
    a("v_bfe_u32 v5, v2, 2, 2")
    a("v_xor_b32 v6, v4, v5")
    a("s_lshl_b32 s38, s36, 7")
    a("v_add_u32 v7, s38, v3")
    a("v_lshlrev_b32 v7, 6, v7")
    a(f"v_lshl_add_u32 v{AA0}, v6, 4, v7")
    a(f"v_xor_b32 v{AA1}, 32, v{AA0}")
    if nt:
        a("s_mul_i32 s38, s37, 96")
        a("v_add_u32 v7, s38, v3")
        a("v_lshlrev_b32 v7, 6, v7")
        a(f"v_lshl_add_u32 v{AB0}, v6, 4, v7")
        a(f"v_add_u32 v{AB0}, 16384, v{AB0}")
        a(f"v_xor_b32 v{AB1}, 32, v{AB0}")
    else:
        a("v_bfe_u32 v3, v2, 2, 2")
        a("v_lshl_add_u32 v3, v4, 3, v3")
        a("v_mul_u32_u24 v3, 384, v3")
        a("v_bfe_u32 v5, v2, 4, 1")
        a("v_lshl_add_u32 v3, v5, 5, v3")
        a("v_and_b32 v5, 3, v2")
        a("v_lshl_add_u32 v3, v5, 3, v3")
        a("s_mul_i32 s38, s37, 192")
        a("s_add_u32 s38, s38, 16384")
        a("v_add_u32 v3, s38, v3")
        a("v_bfe_u32 v5, v2, 3, 1")
        a("v_lshlrev_b32 v5, 6, v5")
        a(f"v_add_u32 v{AB0}, v3, v5")
        a(f"v_sub_u32 v{AB1}, v3, v5")
    for r in range(192):
        a(f"v_mov_b32 v{ACC+r}, 0")
    a("s_mov_b32 s40, 0")
    a(f"s_mov_b32 s41, {K1_N}")
    q = LdsQ(a)
    def rd_a(i, kk, step):
        q.issue(("A", i, step), f"ds_read_b128 {vr(FA+4*i,4)}, v{AA1 if kk else AA0} offset:{i*2048}")
    def rd_b(j, kk, setb, step):
        base = FB + 12 * setb + 4 * j
        if nt:
            q.issue(("B", j, step), f"ds_read_b128 {vr(base,4)}, v{AB1 if kk else AB0} offset:{j*2048}")
        else:
            for hh in range(2):
                areg = AB1 if (j & 1) else AB0
                q.issue(("B", j, step), f"ds_read_b64_tr_b16 {vr(base+2*hh,2)}, v{areg} offset:{kk*6144+hh*1536+j*64}")
    if not nt:
        a("s_cmp_eq_u32 s37, 1")
        a(f"s_cbranch_scc0 L_k1_noswap")
        a(f"v_mov_b32 v3, v{AB0}")
        a(f"v_mov_b32 v{AB0}, v{AB1}")
        a(f"v_mov_b32 v{AB1}, v3")
        a.label("L_k1_noswap")
    a("s_barrier")
    def reads_for(kk, setb, step, slot):
        if slot == 0:
            rd_a(0, kk, step); rd_b(0, kk, setb, step); rd_b(1, kk, setb, step)
        elif slot == 1:
            rd_a(1, kk, step); rd_b(2, kk, setb, step)
        else:
            rd_a(slot, kk, step)
    for s in range(4):
        reads_for(0, 0, 0, s)
    def step(cur_set, nkk, stepid):
        for i in range(4):
            q.need([("A", i, stepid)] + ([("B", j, stepid) for j in range(3)] if i == 0 else []))
            for j in range(3):
                acc = ACC + 16 * (3 * i + j)
                a(f"v_mfma_f32_32x32x16_bf16 {vr(acc,16)}, {vr(FB+12*cur_set+4*j,4)}, {vr(FA+4*i,4)}, {vr(acc,16)}")
            reads_for(nkk, 1 - cur_set, stepid + 1, i)
    a.label(f"L_k1_{tg}_cloop")
    q.done = 0
    step(0, 1, 0)
    a("s_add_u32 s40, s40, 1")
    a(f"s_cmp_eq_u32 s40, {K1_R}")
    a(f"s_cselect_b32 s42, {-(K1_R-1)*K1_S}, {K1_S}")
    a("s_cselect_b32 s40, 0, s40")
    for r in (AA0, AA1, AB0, AB1):
        a(f"v_add_u32 v{r}, s42, v{r}")
    step(1, 0, 1)
    a("s_sub_u32 s41, s41, 1")
    a("s_cmp_lg_u32 s41, 0")
    a("s_barrier")
    a(f"s_cbranch_scc1 L_k1_{tg}_cloop")
    a("s_waitcnt lgkmcnt(0)")
    a("s_nop 15")
    a("v_and_b32 v3, 31, v2")
    a("v_lshrrev_b32 v4, 5, v2")
    a("s_lshl_b32 s38, s36, 7")
    a("v_add_u32 v3, s38, v3")
    a("v_mul_u32_u24 v3, 400, v3")
    a("v_lshl_add_u32 v3, v4, 3, v3")
    a("s_mul_i32 s38, s37, 192")
    a("v_add_u32 v3, s38, v3")
    tmp = 8
    cnt = 0
    for i in range(4):
        for j in range(3):
            acc = ACC + 16 * (3 * i + j)
            for rq in range(4):
                t = tmp + 2 * (cnt % 16); cnt += 1
                a(f"v_cvt_pk_bf16_f32 v{t}, v{acc+4*rq}, v{acc+4*rq+1}")
                a(f"v_cvt_pk_bf16_f32 v{t+1}, v{acc+4*rq+2}, v{acc+4*rq+3}")
                a(f"ds_write_b64 v3, {vr(t,2)} offset:{i*12800+j*64+rq*16}")
    a("s_waitcnt lgkmcnt(0)")
    a(f"s_branch L_k1_{tg}_epi")
    a.label(f"L_k1_{tg}_loader")
    a("s_sub_u32 s36, s32, 4")
    VA = 8
    VB = 9
    a("v_lshrrev_b32 v3, 2, v2")
    a("v_and_b32 v4, 3, v2")
    a("v_bfe_u32 v5, v2, 4, 2")
    a("v_xor_b32 v4, v4, v5")
    a("s_lshl_b32 s37, s36, 6")
    a("s_add_u32 s37, s37, s33")
    a("v_add_u32 v5, s37, v3")
    a("v_mul_u32_u24 v5, 1152, v5")
    a(f"v_lshl_add_u32 v{VA}, v4, 4, v5")
    if nt:
        a("s_mul_i32 s37, s36, 48")
        a("s_add_u32 s37, s37, s34")
        a("v_add_u32 v5, s37, v3")
        a("v_mul_u32_u24 v5, 1152, v5")
        a(f"v_lshl_add_u32 v{VB}, v4, 4, v5")
    else:
        for p in range(3):
            a(f"v_add_u32 v3, {64*p}, v2")
            a("v_mul_u32_u24 v4, 2731, v3")
            a("v_lshrrev_b32 v4, 16, v4")
            a("v_mul_u32_u24 v5, 24, v4")
            a("v_sub_u32 v5, v3, v5")
            a("v_bfe_u32 v6, v4, 1, 1")
            a("v_lshlrev_b32 v6, 2, v6")
            a("v_xor_b32 v5, v5, v6")
            a("s_lshl_b32 s37, s36, 3")
            a("v_add_u32 v4, s37, v4")
            a("s_mov_b32 s37, 9216")
            a("v_mul_lo_u32 v4, v4, s37")
            a("v_lshl_add_u32 v4, v5, 4, v4")
            a("s_lshl_b32 s37, s34, 1")
            a(f"v_add_u32 v{VB+p}, s37, v4")
    a("s_lshl_b32 s38, s36, 12")
    a("s_mul_i32 s39, s36, 3072")
    a("s_add_u32 s39, s39, 16384")
    a("s_mov_b32 s40, 0")
    a("s_mov_b32 s43, 0")
    a("s_mov_b32 s44, 0")
    def issue():
        for qq in range(4):
            a(f"s_add_u32 m0, s38, {qq*1024}")
            a(f"s_add_u32 s45, s43, {qq*18432}")
            a(f"buffer_load_dwordx4 v{VA}, s[{SA}:{SA+3}], s45 offen lds")
        for p in range(3):
            a(f"s_add_u32 m0, s39, {p*1024}")
            if nt:
                a(f"s_add_u32 s45, s44, {p*18432}")
                a(f"buffer_load_dwordx4 v{VB}, s[{SB}:{SB+3}], s45 offen lds")
            else:
                a("s_nop 0")
                a(f"buffer_load_dwordx4 v{VB+p}, s[{SB}:{SB+3}], s44 offen lds")
        a("s_add_u32 s43, s43, 64")
        a(f"s_add_u32 s44, s44, {64 if nt else 32*9216}")
        a("s_add_u32 s40, s40, 1")
        a(f"s_cmp_eq_u32 s40, {K1_R}")
        a(f"s_cselect_b32 s42, {-(K1_R-1)*K1_S}, {K1_S}")
        a("s_cselect_b32 s40, 0, s40")
        a("s_add_u32 s38, s38, s42")
        a("s_add_u32 s39, s39, s42")
    for st in range(4):
        issue()
    a("s_waitcnt vmcnt(14)")
    a("s_barrier")
    a(f"s_mov_b32 s41, {K1_N-4}")
    a.label(f"L_k1_{tg}_lloop")
    issue()
    a("s_sub_u32 s41, s41, 1")
    a("s_cmp_lg_u32 s41, 0")
    a("s_waitcnt vmcnt(14)")
    a("s_barrier")
    a(f"s_cbranch_scc1 L_k1_{tg}_lloop")
    a("s_waitcnt vmcnt(7)")
    a("s_barrier")
    a("s_waitcnt vmcnt(0)")
    a("s_barrier")
    a("s_barrier")
    a("s_barrier")
    a.label(f"L_k1_{tg}_epi")
    a("s_barrier")
    LA = 8
    GO = 11
    BI = 16
    D = 40
    for ph in range(3):
        a(f"v_add_u32 v3, {512*ph}, v0")
        a("v_mul_u32_u24 v4, 2731, v3")
        a("v_lshrrev_b32 v4, 16, v4")
        a("v_mul_u32_u24 v5, 24, v4")
        a("v_sub_u32 v5, v3, v5")
        a("v_mul_u32_u24 v6, 400, v4")
        a(f"v_lshl_add_u32 v{LA+ph}, v5, 4, v6")
        a("v_add_u32 v4, s33, v4")
        a(f"s_mov_b32 s37, {ldo}")
        a("v_mul_lo_u32 v4, v4, s37")
        a("v_lshl_add_u32 v4, v5, 4, v4")
        a("s_lshl_b32 s37, s34, 1")
        a(f"v_add_u32 v{GO+ph}, s37, v4")
        if not nt:
            a("v_lshlrev_b32 v5, 4, v5")
            a(f"buffer_load_dwordx4 {vr(D+4*ph,4)}, v5, s[{SBI}:{SBI+3}], s37 offen")
    a("s_mov_b32 s46, 0xffff0000")
    if not nt:
        a("s_waitcnt vmcnt(0)")
        for ph in range(3):
            for e in range(4):
                a(f"v_lshlrev_b32 v{BI+8*ph+2*e}, 16, v{D+4*ph+e}")
                a(f"v_and_b32 v{BI+8*ph+2*e+1}, s46, v{D+4*ph+e}")
        a("s_mov_b32 s47, 0xc0135761")
        a("s_mov_b32 s48, 0xbdd2d3e7")
    for t in range(4):
        a(f"s_mov_b32 s37, {t*64*ldo}")
        if t == 2:
            for ph in range(3):
                a(f"v_add_u32 v{LA+ph}, 51200, v{LA+ph}")
        for ph in range(3):
            DD = D + 16 * ph
            a(f"ds_read_b128 {vr(DD,4)}, v{LA+ph} offset:{(t%2)*25600}")
        for ph in range(3):
            DD = D + 16 * ph
            a(f"s_waitcnt lgkmcnt({2-ph})")
            if not nt:
                X = DD + 4
                for e in range(4):
                    a(f"v_lshlrev_b32 v{X+2*e}, 16, v{DD+e}")
                    a(f"v_and_b32 v{X+2*e+1}, s46, v{DD+e}")
                for e in range(8):
                    a(f"v_add_f32 v{X+e}, v{X+e}, v{BI+8*ph+e}")
                for e in range(4):
                    a(f"v_cvt_pk_bf16_f32 v{DD+e}, v{X+2*e}, v{X+2*e+1}")
                    a(f"v_lshlrev_b32 v{X+2*e}, 16, v{DD+e}")
                    a(f"v_and_b32 v{X+2*e+1}, s46, v{DD+e}")
                for e in range(8):
                    T0 = DD + 12 + (e & 3)
                    a(f"v_mul_f32 v{T0}, v{X+e}, v{X+e}")
                    a(f"v_mov_b32 v{DD+(e&3)}, s47")
                    a(f"v_fmac_f32 v{DD+(e&3)}, s48, v{T0}")
                    a(f"v_mul_f32 v{T0}, v{X+e}, v{DD+(e&3)}")
                    a(f"v_exp_f32 v{T0}, v{T0}")
                    a("s_nop 0")
                    a(f"v_add_f32 v{T0}, 1.0, v{T0}")
                    a(f"v_rcp_f32 v{T0}, v{T0}")
                    a("s_nop 0")
                    a(f"v_mul_f32 v{X+e}, v{X+e}, v{T0}")
                for e in range(4):
                    a(f"v_cvt_pk_bf16_f32 v{DD+e}, v{X+2*e}, v{X+2*e+1}")
            a(f"buffer_store_dwordx4 {vr(DD,4)}, v{GO+ph}, s[{SO}:{SO+3}], s37 offen")
    a("s_endpgm")

K2_S = 34816
K2_R = 4
def gen_k2(a):
    name = "gemm2_kernel"
    kernel_header(a, name)
    SA, SB, SO = 16, 20, 24
    a("s_cmp_ge_u32 s2, 256")
    a("s_cbranch_scc1 L_k2_done")
    a("s_load_dwordx4 s[4:7], s[0:1], 8")
    a("s_load_dwordx2 s[8:9], s[0:1], 64")
    a("s_load_dwordx2 s[12:13], s[0:1], 96")
    a("v_lshrrev_b32 v1, 6, v0")
    a("v_and_b32 v2, 63, v0")
    a("s_and_b32 s33, s2, 3")
    a("s_bfe_u32 s34, s2, 0x10002")
    a("s_lshr_b32 s35, s2, 3")
    a("v_readfirstlane_b32 s32, v1")
    a("s_lshr_b32 s36, s35, 2")
    a("s_lshl_b32 s34, s34, 3")
    a("s_add_u32 s34, s34, s36")
    a("s_lshl_b32 s34, s34, 7")
    a("s_and_b32 s35, s35, 3")
    a("s_mul_i32 s35, s35, 144")
    a("s_waitcnt lgkmcnt(0)")
    a("s_cmp_ge_u32 s33, 2")
    a("s_cbranch_scc1 L_k2_mlp")
    a("s_cmp_eq_u32 s33, 1")
    a("s_cselect_b32 s16, s6, s4")
    a("s_cselect_b32 s17, s7, s5")
    a(f"s_mov_b32 s18, {2048*2048*2}")
    a(f"s_cselect_b32 s36, {LY.B}, {LY.A}")
    a("s_add_u32 s20, s12, s36")
    a("s_addc_u32 s21, s13, 0")
    a(f"s_mov_b32 s22, {LY.SZ}")
    a("s_mov_b32 s46, 4096")
    a("s_mov_b32 s47, 32")
    a("s_branch L_k2_go")
    a.label("L_k2_mlp")
    a("s_cmp_eq_u32 s33, 3")
    a(f"s_cselect_b32 s36, {LY.H + 2304*2}, {LY.H}")
    a(f"s_cselect_b32 s18, {LY.HSZ - 2304*2}, {LY.HSZ}")
    a(f"s_cselect_b32 s37, {2304*1152}, 0")
    a(f"s_cselect_b32 s22, {2304*1152}, {4608*1152}")
    a("s_add_u32 s16, s12, s36")
    a("s_addc_u32 s17, s13, 0")
    a("s_add_u32 s20, s8, s37")
    a("s_addc_u32 s21, s9, 0")
    a("s_mov_b32 s46, 9216")
    a("s_mov_b32 s47, 36")
    a.label("L_k2_go")
    a("s_mov_b32 s19, 0x00020000")
    a("s_mov_b32 s23, 0x00020000")
    a(f"s_mul_i32 s36, s33, {LY.PSZ}")
    a(f"s_add_u32 s36, s36, {LY.P0}")
    a("s_add_u32 s24, s12, s36")
    a("s_addc_u32 s25, s13, 0")
    a(f"s_mov_b32 s26, {LY.PSZ}")
    a("s_mov_b32 s27, 0x00020000")
    a("s_cmp_ge_u32 s32, 4")
    a("s_cbranch_scc1 L_k2_loader")
    ACC = 112
    FA = 8
    FB = 40
    AA, AP, AQ, AR = 76, 77, 78, 79
    a("s_lshr_b32 s36, s32, 1")
    a("s_and_b32 s37, s32, 1")
    a("v_and_b32 v3, 15, v2")
    a("v_lshrrev_b32 v4, 4, v2")
    a("s_lshl_b32 s38, s37, 2")
    a("v_add_u32 v5, s38, v4")
    a("v_lshrrev_b32 v6, 1, v3")
    a("v_xor_b32 v5, v5, v6")
    a("s_lshl_b32 s38, s36, 6")
    a("v_add_u32 v6, s38, v3")
    a("v_lshlrev_b32 v6, 7, v6")
    a(f"v_lshl_add_u32 v{AA}, v5, 4, v6")
    a("v_lshrrev_b32 v5, 2, v3")
    a("v_lshl_add_u32 v5, v4, 3, v5")
    a("s_lshl_b32 s38, s37, 5")
    a("v_add_u32 v5, s38, v5")
    a("v_mul_u32_u24 v5, 288, v5")
    a("v_and_b32 v6, 3, v3")
    a("v_lshl_add_u32 v5, v6, 3, v5")
    a(f"v_add_u32 v{AR}, 16384, v5")
    a("v_and_b32 v6, 1, v4")
    a("v_lshlrev_b32 v6, 7, v6")
    a(f"v_add_u32 v{AP}, v{AR}, v6")
    a(f"v_sub_u32 v{AQ}, v{AR}, v6")
    for r in range(144):
        a(f"v_mov_b32 v{ACC+r}, 0")
    a("s_mov_b32 s40, 0")
    a("s_lshr_b32 s41, s47, 1")
    q = LdsQ(a)
    def rd_a(i, seta, st):
        q.issue(("A", i, st), f"ds_read_b128 {vr(FA+16*seta+4*i,4)}, v{AA} offset:{i*2048}")
    def rd_b(j, st):
        if j < 4:
            o0, o1 = (AP, 32*j), (AQ, 128 + 1152 + 32*j)
        elif j < 8:
            o0, o1 = (AQ, 32*j), (AP, 1152 - 128 + 32*j)
        else:
            o0, o1 = (AR, 256), (AR, 1152 + 256)
        q.issue(("B", j, st), f"ds_read_b64_tr_b16 {vr(FB+4*j,2)}, v{o0[0]} offset:{o0[1]}")
        q.issue(("B", j, st), f"ds_read_b64_tr_b16 {vr(FB+4*j+2,2)}, v{o1[0]} offset:{o1[1]}")
    def advance():
        a("s_add_u32 s40, s40, 1")
        a(f"s_cmp_eq_u32 s40, {K2_R}")
        a(f"s_cselect_b32 s42, {-(K2_R-1)*K2_S}, {K2_S}")
        a("s_cselect_b32 s40, 0, s40")
        for r in (AA, AP, AQ, AR):
            a(f"v_add_u32 v{r}, s42, v{r}")
    a("s_barrier")
    for j in range(9):
        if j < 4:
            rd_a(j, 0, 0)
        rd_b(j, 0)
    advance()
    def stage(cur, st):
        for j in range(9):
            q.need([("B", j, st)] + ([("A", i, st) for i in range(4)] if j == 0 else []))
            for i in range(4):
                acc = ACC + 4 * (9 * i + j)
                a(f"v_mfma_f32_16x16x32_bf16 {vr(acc,4)}, {vr(FB+4*j,4)}, {vr(FA+16*cur+4*i,4)}, {vr(acc,4)}")
            if j < 4:
                rd_a(j, 1 - cur, st + 1)
            rd_b(j, st + 1)
        advance()
    a.label("L_k2_cloop")
    q.done = 0
    stage(0, 0)
    a("s_barrier")
    stage(1, 1)
    a("s_sub_u32 s41, s41, 1")
    a("s_cmp_lg_u32 s41, 0")
    a("s_barrier")
    a("s_cbranch_scc1 L_k2_cloop")
    a("s_waitcnt lgkmcnt(0)")
    a("s_nop 15")
    a("s_mul_i32 s38, s36, 36864")
    a("v_lshlrev_b32 v3, 4, v2")
    a("v_add_u32 v3, s38, v3")
    a("s_cmp_eq_u32 s37, 0")
    a("s_cbranch_scc1 L_k2_kg0")
    for t in range(36):
        a(f"ds_write_b128 v3, {vr(ACC+4*t,4)} offset:{t*1024}")
    a("s_waitcnt lgkmcnt(0)")
    a("s_barrier")
    a("s_branch L_k2_done")
    a.label("L_k2_kg0")
    a("s_barrier")
    a("v_and_b32 v4, 15, v2")
    a("v_lshrrev_b32 v5, 4, v2")
    a("s_lshl_b32 s38, s36, 6")
    a("s_add_u32 s38, s38, s34")
    a("v_add_u32 v4, s38, v4")
    a("v_mul_u32_u24 v4, 576, v4")
    a("v_lshl_add_u32 v4, v5, 2, v4")
    a("v_add_u32 v4, s35, v4")
    a("v_lshlrev_b32 v4, 2, v4")
    for i in range(4):
        a(f"s_mov_b32 s38, {i*16*2304}")
        for j in range(9):
            t = 9 * i + j
            a(f"ds_read_b128 {vr(8+4*j,4)}, v3 offset:{t*1024}")
        for j in range(9):
            t = 9 * i + j
            a(f"s_waitcnt lgkmcnt({8-j})")
            for e in range(4):
                a(f"v_add_f32 v{ACC+4*t+e}, v{ACC+4*t+e}, v{8+4*j+e}")
            a(f"buffer_store_dwordx4 {vr(ACC+4*t,4)}, v4, s[{SO}:{SO+3}], s38 offen offset:{j*64}")
    a("s_branch L_k2_done")
    a.label("L_k2_loader")
    a("s_sub_u32 s36, s32, 4")
    VA0, VA1 = 8, 9
    VB = 10
    a("v_lshrrev_b32 v3, 3, v2")
    a("v_and_b32 v4, 7, v2")
    a("v_lshrrev_b32 v5, 4, v2")
    a("v_xor_b32 v4, v4, v5")
    a("s_lshl_b32 s37, s36, 5")
    a("s_add_u32 s37, s37, s34")
    a("v_add_u32 v5, s37, v3")
    a("v_mul_lo_u32 v5, v5, s46")
    a(f"v_lshl_add_u32 v{VA0}, v4, 4, v5")
    a("v_xor_b32 v4, 4, v4")
    a(f"v_lshl_add_u32 v{VA1}, v4, 4, v5")
    for p in range(5):
        a(f"v_add_u32 v3, {64*p}, v2")
        a("v_mul_u32_u24 v4, 3641, v3")
        a("v_lshrrev_b32 v4, 16, v4")
        a("v_mul_u32_u24 v5, 18, v4")
        a("v_sub_u32 v5, v3, v5")
        a("v_bfe_u32 v6, v4, 2, 1")
        a("v_bfe_u32 v7, v4, 3, 1")
        a("v_xor_b32 v6, v6, v7")
        a("v_lshlrev_b32 v6, 3, v6")
        a("v_xor_b32 v6, v5, v6")
        a("v_cmp_gt_u32 vcc, 16, v5")
        a("s_nop 1")
        a("v_cndmask_b32 v5, v5, v6, vcc")
        a("s_lshl_b32 s37, s36, 4")
        a("v_add_u32 v4, s37, v4")
        a("v_mul_u32_u24 v4, 1152, v4")
        a("v_lshl_add_u32 v4, v5, 4, v4")
        a("s_lshl_b32 s37, s35, 1")
        a(f"v_add_u32 v{VB+p}, s37, v4")
    a("s_lshl_b32 s38, s36, 12")
    a("s_mul_i32 s39, s36, 4608")
    a("s_add_u32 s39, s39, 16384")
    a("s_mov_b32 s40, 0")
    a("s_mov_b32 s43, 0")
    a("s_mov_b32 s44, 0")
    a("s_lshl_b32 s48, s46, 3")
    def issue():
        for qq in range(4):
            a(f"s_add_u32 m0, s38, {qq*1024}")
            if qq == 0:
                a("s_mov_b32 s45, s43")
            else:
                a("s_add_u32 s45, s45, s48")
            a(f"buffer_load_dwordx4 v{VA1 if qq & 1 else VA0}, s[{SA}:{SA+3}], s45 offen lds")
        for p in range(5):
            a(f"s_add_u32 m0, s39, {p*1024}")
            if p == 4:
                a("s_mov_b64 exec, 0xffffffff")
            else:
                a("s_nop 0")
            a(f"buffer_load_dwordx4 v{VB+p}, s[{SB}:{SB+3}], s44 offen lds")
        a("s_mov_b64 exec, -1")
        a("s_add_u32 s43, s43, 128")
        a(f"s_add_u32 s44, s44, {64*1152}")
        a("s_add_u32 s40, s40, 1")
        a(f"s_cmp_eq_u32 s40, {K2_R}")
        a(f"s_cselect_b32 s42, {-(K2_R-1)*K2_S}, {K2_S}")
        a("s_cselect_b32 s40, 0, s40")
        a("s_add_u32 s38, s38, s42")
        a("s_add_u32 s39, s39, s42")
    for st in range(3):
        issue()
    a("s_waitcnt vmcnt(9)")
    a("s_barrier")
    a("s_sub_u32 s41, s47, 3")
    a.label("L_k2_lloop")
    issue()
    a("s_sub_u32 s41, s41, 1")
    a("s_cmp_lg_u32 s41, 0")
    a("s_waitcnt vmcnt(9)")
    a("s_barrier")
    a("s_cbranch_scc1 L_k2_lloop")
    a("s_waitcnt vmcnt(0)")
    a("s_barrier")
    a("s_barrier")
    a("s_barrier")
    a("s_barrier")
    a.label("L_k2_done")
    a("s_endpgm")
    return kernel_desc(name, 256)

def gen_k3(a):
    name = "final_kernel"
    kernel_header(a, name)
    a("s_cmp_ge_u32 s2, 576")
    a("s_cbranch_scc1 L_k3_done")
    a("s_load_dwordx2 s[4:5], s[0:1], 0")
    a("s_load_dwordx4 s[8:11], s[0:1], 72")
    a("s_load_dwordx2 s[12:13], s[0:1], 96")
    a("s_lshl_b32 s3, s2, 8")
    a("v_add_u32 v1, s3, v0")
    a("s_mov_b32 s3, 59652324")
    a("v_mul_hi_u32 v2, v1, s3")
    a("v_mul_u32_u24 v2, 72, v2")
    a("v_sub_u32 v2, v1, v2")
    a("v_lshlrev_b32 v2, 4, v2")
    a("v_lshlrev_b32 v3, 4, v1")
    a("v_lshlrev_b32 v4, 5, v1")
    a("s_waitcnt lgkmcnt(0)")
    srd(a, 16, 4, 5, LY.SZ)
    srd(a, 20, 8, 9, 576 * 2)
    srd(a, 24, 10, 11, LY.SZ)
    srd(a, 28, 12, 13, 4 * LY.PSZ, LY.P0)
    a("buffer_load_dwordx4 v[8:11], v3, s[16:19], 0 offen")
    a("buffer_load_dwordx4 v[12:15], v2, s[20:23], 0 offen")
    for p in range(4):
        a(f"s_mov_b32 s3, {p*LY.PSZ}")
        a(f"buffer_load_dwordx4 {vr(16+8*p,4)}, v4, s[28:31], s3 offen")
        a(f"buffer_load_dwordx4 {vr(20+8*p,4)}, v4, s[28:31], s3 offen offset:16")
    a("s_mov_b32 s14, 0xffff0000")
    a("s_mov_b32 s15, 0xbfb8aa3b")
    a("s_waitcnt vmcnt(0)")
    X, BB = 48, 56
    for e in range(4):
        a(f"v_lshlrev_b32 v{X+2*e}, 16, v{8+e}")
        a(f"v_and_b32 v{X+2*e+1}, s14, v{8+e}")
        a(f"v_lshlrev_b32 v{BB+2*e}, 16, v{12+e}")
        a(f"v_and_b32 v{BB+2*e+1}, s14, v{12+e}")
    def rpair(r0, r1, t):
        a(f"v_cvt_pk_bf16_f32 v{t}, v{r0}, v{r1}")
        a(f"v_lshlrev_b32 v{r0}, 16, v{t}")
        a(f"v_and_b32 v{r1}, s14, v{t}")
    SRE, SIM, ML, MH = 16, 24, 32, 40
    for e in range(0, 8, 2):
        rpair(SRE+e, SRE+e+1, 64)
        rpair(SIM+e, SIM+e+1, 65)
        for k in range(2):
            a(f"v_sub_f32 v{SRE+e+k}, v{SRE+e+k}, v{SIM+e+k}")
            a(f"v_add_f32 v{ML+e+k}, v{ML+e+k}, v{MH+e+k}")
        rpair(SRE+e, SRE+e+1, 64)
        rpair(ML+e, ML+e+1, 65)
        for k in range(2):
            a(f"v_add_f32 v{ML+e+k}, v{ML+e+k}, v{BB+e+k}")
        rpair(ML+e, ML+e+1, 65)
        for k in range(2):
            a(f"v_mul_f32 v{66+k}, s15, v{ML+e+k}")
            a(f"v_exp_f32 v{66+k}, v{66+k}")
        a("s_nop 0")
        for k in range(2):
            a(f"v_add_f32 v{66+k}, 1.0, v{66+k}")
            a(f"v_rcp_f32 v{66+k}, v{66+k}")
        a("s_nop 0")
        for k in range(2):
            a(f"v_mul_f32 v{ML+e+k}, v{ML+e+k}, v{66+k}")
        rpair(ML+e, ML+e+1, 65)
        for k in range(2):
            a(f"v_mul_f32 v{SRE+e+k}, v{SRE+e+k}, v{ML+e+k}")
        rpair(SRE+e, SRE+e+1, 64)
        for k in range(2):
            a(f"v_add_f32 v{SRE+e+k}, v{SRE+e+k}, v{X+e+k}")
        a(f"v_cvt_pk_bf16_f32 v{8+e//2}, v{SRE+e}, v{SRE+e+1}")
    a("buffer_store_dwordx4 v[8:11], v3, s[24:27], 0 offen")
    a.label("L_k3_done")
    a("s_endpgm")
    return kernel_desc(name, 72)

def main():
    a = Asm()
    hdr = open(f"cdna_kernels/{NAME}.s.ref").read().split("; Override launch")[0]
    descs = [gen_ln(a), gen_k1(a), gen_k2(a), gen_k3(a)]
    out = hdr
    out += "; @launch kernel=ln_kernel grid=(256,1,1) block=(256,1,1) lds=0\n"
    out += f"; @launch kernel=gemm1_kernel grid=(240,1,1) block=(512,1,1) lds={K1_S*K1_R}\n"
    out += f"; @launch kernel=gemm2_kernel grid=(256,1,1) block=(512,1,1) lds={K2_S*K2_R}\n"
    out += "; @launch kernel=final_kernel grid=(576,1,1) block=(256,1,1) lds=0\n"
    out += '.amdgcn_target "amdgcn-amd-amdhsa--gfx950"\n'
    out += "\n".join(a.lines) + "\n"
    out += "\n".join(descs)
    dst = sys.argv[1] if len(sys.argv) > 1 else f"cdna_kernels/{NAME}.s"
    open(dst, "w").write(out)
    print("wrote", dst, len(out))

main()
```

```python
import sys, re, os
NOADV = int(os.environ.get('NOADV', '0'))
NOCOMP = int(os.environ.get('NOCOMP', '0'))
NOLOAD = int(os.environ.get('NOLOAD', '0'))
NOSTORE = int(os.environ.get('NOSTORE', '0'))
STAMP = int(os.environ.get('STAMP', '0'))
PF2 = int(os.environ.get('PF2', '10'))
ROT = int(os.environ.get('ROT', '0'))
PFH = int(os.environ.get('PFH', '0'))
import layout as LY

NAME = "recurrent_scan__spectral_fnet__mixer_channel_mlp__prompt"

class Asm:
    def __init__(self):
        self.lines = []
        self.uid = 0
        self.inloop = False
    def __call__(self, s):
        if NOCOMP and (s.startswith("v_mfma") or s.startswith("ds_read_b64_tr") or (s.startswith("ds_read_b128") and self.inloop)):
            return
        if NOLOAD and s.endswith(" lds"):
            return
        if NOSTORE and s.startswith("buffer_store_dwordx4") and "s[24:27]" in s and "v3," not in s:
            return
        m = re.match(r"s_cselect_b32 (s\d+), (-?\d+), (-?\d+)$", s)
        if m and not (-16 <= int(m.group(2)) <= 64) and not (-16 <= int(m.group(3)) <= 64):
            self.lines.append(f"    s_mov_b32 {m.group(1)}, {m.group(3)}")
            self.lines.append(f"    s_cselect_b32 {m.group(1)}, {m.group(2)}, {m.group(1)}")
            return
        self.lines.append("    " + s)
    def label(self, l):
        self.lines.append(l + ":")
    def raw(self, s):
        self.lines.append(s)
    def c(self, s):
        self.lines.append("    ; " + s)
    def newlabel(self, p):
        self.uid += 1
        return f"L_{p}_{self.uid}"

def vr(b, n=1):
    return f"v{b}" if n == 1 else f"v[{b}:{b+n-1}]"
def sr(b, n=1):
    return f"s{b}" if n == 1 else f"s[{b}:{b+n-1}]"

def srd(a, d, base_lo, base_hi, nbytes, off=0):
    if off:
        a(f"s_add_u32 s{d}, s{base_lo}, {off}")
        a(f"s_addc_u32 s{d+1}, s{base_hi}, 0")
    else:
        a(f"s_mov_b32 s{d}, s{base_lo}")
        a(f"s_mov_b32 s{d+1}, s{base_hi}")
    a(f"s_mov_b32 s{d+2}, {nbytes}")
    a(f"s_mov_b32 s{d+3}, 0x00020000")

def stamp_init(a, koff=0):
    if not STAMP: return
    a("s_load_dwordx2 s[80:81], s[0:1], 96")
    a("s_waitcnt lgkmcnt(0)")
    a(f"s_add_u32 s80, s80, {48*1024*1024 + koff}")
    a("s_addc_u32 s81, s81, 0")
    a("s_mov_b32 s82, 65536")
    a("s_mov_b32 s83, 0x00020000")
def stamp(a, slot):
    if not STAMP: return
    a("s_memrealtime s[92:93]")
    a("s_waitcnt lgkmcnt(0)")
    a("s_lshl_b32 s93, s32, 5")
    a("s_lshl_b32 s94, s2, 8")
    a("s_add_u32 s93, s93, s94")
    a(f"s_add_u32 s93, s93, {slot*4}")
    a("v_mov_b32 v254, s92")
    a("v_mov_b32 v255, s93")
    a("buffer_store_dword v254, v255, s[80:83], 0 offen")

def kernel_header(a, name):
    a.raw(".text")
    a.raw(f".globl {name}")
    a.raw(".p2align 8")
    a.raw(f".type {name},@function")
    a.label(name)

def kernel_desc(name, vgpr, sgpr=96):
    acc = (vgpr + 3) // 4 * 4
    return f""".section .rodata,"a"
.p2align 6
.amdhsa_kernel {name}
  .amdhsa_next_free_vgpr {vgpr}
  .amdhsa_next_free_sgpr {sgpr}
  .amdhsa_accum_offset {acc}
  .amdhsa_group_segment_fixed_size 0
  .amdhsa_kernarg_size 104
  .amdhsa_user_sgpr_count 2
  .amdhsa_user_sgpr_kernarg_segment_ptr 1
  .amdhsa_system_sgpr_workgroup_id_x 1
.end_amdhsa_kernel
"""

class LdsQ:
    def __init__(self, a):
        self.a = a
        self.q = []
        self.done = 0
    def issue(self, tag, text):
        self.a(text)
        self.q.append(tag)
    def need(self, tags):
        idx = -1
        for t in tags:
            for p in range(len(self.q) - 1, -1, -1):
                if self.q[p] == t:
                    idx = max(idx, p)
                    break
            else:
                raise Exception(f"tag {t} never issued")
        if idx < self.done:
            return
        n = len(self.q) - 1 - idx
        n = min(n, 15)
        self.a(f"s_waitcnt lgkmcnt({n})")
        self.done = len(self.q) - n

def gen_ln(a):
    name = "ln_kernel"
    kernel_header(a, name)
    a("s_cmp_ge_u32 s2, 256")
    a("s_cbranch_scc1 L_ln_done")
    a("s_load_dwordx2 s[4:5], s[0:1], 0")
    a("s_load_dwordx2 s[6:7], s[0:1], 96")
    a("v_lshrrev_b32 v1, 5, v0")
    a("s_lshl_b32 s3, s2, 3")
    a("v_add_u32 v1, s3, v1")
    a("v_and_b32 v2, 31, v0")
    a("v_mul_u32_u24 v1, 1152, v1")
    a("v_lshl_add_u32 v1, v2, 2, v1")
    a("s_waitcnt lgkmcnt(0)")
    srd(a, 8, 4, 5, LY.SZ)
    srd(a, 12, 6, 7, 2 * LY.SZ)
    P = 10
    F = 20
    for j in range(9):
        a(f"buffer_load_dword v{P+j}, v1, s[8:11], 0 offen offset:{j*128}")
    a("s_mov_b32 s16, 0xffff0000")
    a("s_mov_b32 s17, 0x3ae38e39")
    a("s_mov_b32 s18, 0x3727c5ac")
    a("s_waitcnt vmcnt(0)")
    for j in range(9):
        a(f"v_lshlrev_b32 v{F+2*j}, 16, v{P+j}")
        a(f"v_and_b32 v{F+2*j+1}, s16, v{P+j}")
    S, T, M, D, R, Q, E = 40, 41, 42, 43, 44, 45, 46
    G = 50
    def reduce32(v):
        for sh in (8, 4, 2, 1):
            a("s_nop 1")
            a(f"v_add_f32_dpp v{v}, v{v}, v{v} row_ror:{sh} row_mask:0xf bank_mask:0xf")
        a(f"ds_swizzle_b32 v{T}, v{v} offset:0x401F")
        a("s_waitcnt lgkmcnt(0)")
        a(f"v_add_f32 v{v}, v{v}, v{T}")
    def rbf(v):
        a(f"v_cvt_pk_bf16_f32 v{v}, v{v}, v{v}")
        a(f"v_lshlrev_b32 v{v}, 16, v{v}")
    def ln(outoff):
        a(f"v_add_f32 v{S}, v{F}, v{F+1}")
        for i in range(2, 18):
            a(f"v_add_f32 v{S}, v{S}, v{F+i}")
        reduce32(S)
        a(f"v_mul_f32 v{M}, s17, v{S}")
        for i in range(18):
            a(f"v_sub_f32 v{G+i}, v{F+i}, v{M}")
        a(f"v_mul_f32 v{S}, v{G}, v{G}")
        for i in range(1, 18):
            a(f"v_fmac_f32 v{S}, v{G+i}, v{G+i}")
        reduce32(S)
        a(f"v_mul_f32 v{D}, s17, v{S}")
        rbf(D)
        a(f"v_add_f32 v{D}, s18, v{D}")
        rbf(D)
        a(f"v_sqrt_f32 v{D}, v{D}")
        a("s_nop 0")
        rbf(D)
        rbf(M)
        a(f"v_rcp_f32 v{R}, v{D}")
        for i in range(18):
            a(f"v_sub_f32 v{G+i}, v{F+i}, v{M}")
        for j in range(9):
            a(f"v_cvt_pk_bf16_f32 v{P+j}, v{G+2*j}, v{G+2*j+1}")
            a(f"v_lshlrev_b32 v{G+2*j}, 16, v{P+j}")
            a(f"v_and_b32 v{G+2*j+1}, s16, v{P+j}")
        for i in range(18):
            a(f"v_mul_f32 v{Q}, v{G+i}, v{R}")
            a(f"v_fma_f32 v{E}, -v{Q}, v{D}, v{G+i}")
            a(f"v_fma_f32 v{F+i}, v{E}, v{R}, v{Q}")
        for j in range(9):
            a(f"v_cvt_pk_bf16_f32 v{P+j}, v{F+2*j}, v{F+2*j+1}")
            a(f"v_lshlrev_b32 v{F+2*j}, 16, v{P+j}")
            a(f"v_and_b32 v{F+2*j+1}, s16, v{P+j}")
        a(f"s_mov_b32 s19, {outoff}")
        for j in range(9):
            a(f"buffer_store_dword v{P+j}, v1, s[12:15], s19 offen offset:{j*128}")
    ln(LY.XN)
    a("s_nop 1")
    ln(LY.Y)
    a.label("L_ln_done")
    a("s_endpgm")
    return kernel_desc(name, 72)

K1_S = 28672
K1_R = 5
K1_N = 18
def gen_k1(a):
    name = "gemm1_kernel"
    kernel_header(a, name)
    a("s_cmp_ge_u32 s2, 240")
    a("s_cbranch_scc1 L_k1_done")
    stamp_init(a)
    a("s_load_dwordx4 s[4:7], s[0:1], 24")
    a("s_load_dwordx4 s[8:11], s[0:1], 48")
    a("s_load_dwordx2 s[12:13], s[0:1], 96")
    a("v_lshrrev_b32 v1, 6, v0")
    a("v_and_b32 v2, 63, v0")
    a("s_and_b32 s33, s2, 7")
    a("s_lshr_b32 s34, s2, 3")
    a("s_mul_i32 s33, s33, 30")
    a("s_add_u32 s34, s34, s33")
    a("s_and_b32 s33, s34, 7")
    a("s_lshr_b32 s34, s34, 3")
    a("v_readfirstlane_b32 s32, v1")
    a("s_lshl_b32 s33, s33, 8")
    a("s_waitcnt lgkmcnt(0)")
    a("s_cmp_ge_u32 s34, 24")
    a("s_cbranch_scc1 L_k1_nt")
    gen_k1_path(a, False)
    a.label("L_k1_nt")
    gen_k1_path(a, True)
    a.label("L_k1_done")
    a("s_endpgm")
    return kernel_desc(name, 256)

def gen_k1_path(a, nt):
    tg = "nt" if nt else "nn"
    SA, SB, SO, SBI = 16, 20, 24, 28
    if nt:
        srd(a, SA, 12, 13, LY.SZ, LY.XN)
        a("s_sub_u32 s34, s34, 24")
        a("s_cmp_ge_u32 s34, 3")
        a("s_cselect_b32 s20, s6, s4")
        a("s_cselect_b32 s21, s7, s5")
        a(f"s_mov_b32 s22, {576*576*2}")
        a("s_mov_b32 s23, 0x00020000")
        a(f"s_cselect_b32 s35, {LY.B}, {LY.A}")
        a("s_add_u32 s24, s12, s35")
        a("s_addc_u32 s25, s13, 0")
        a(f"s_mov_b32 s26, {LY.SZ}")
        a("s_mov_b32 s27, 0x00020000")
        a("s_cmp_ge_u32 s34, 3")
        a("s_cselect_b32 s35, 3, 0")
        a("s_sub_u32 s34, s34, s35")
        a("s_mul_i32 s34, s34, 192")
        ldo = 1152
    else:
        srd(a, SA, 12, 13, LY.SZ, LY.Y)
        srd(a, SB, 8, 9, 576 * 4608 * 2)
        srd(a, SO, 12, 13, LY.HSZ, LY.H)
        srd(a, SBI, 10, 11, 4608 * 2)
        a("s_mul_i32 s34, s34, 192")
        ldo = 9216
    stamp(a, 0)
    a("s_cmp_ge_u32 s32, 4")
    a(f"s_cbranch_scc1 L_k1_{tg}_loader")
    ACC = 64
    FA = 8
    FB = 24
    AA0, AA1, AB0, AB1 = 48, 49, 50, 51
    a("s_lshr_b32 s36, s32, 1")
    a("s_and_b32 s37, s32, 1")
    a("v_and_b32 v3, 31, v2")
    a("v_lshrrev_b32 v4, 5, v2")
    a("v_bfe_u32 v5, v2, 2, 2")
    a("v_xor_b32 v6, v4, v5")
    a("s_lshl_b32 s38, s36, 7")
    a("v_add_u32 v7, s38, v3")
    a("v_lshlrev_b32 v7, 6, v7")
    a(f"v_lshl_add_u32 v{AA0}, v6, 4, v7")
    a(f"v_xor_b32 v{AA1}, 32, v{AA0}")
    if nt:
        a("s_mul_i32 s38, s37, 96")
        a("v_add_u32 v7, s38, v3")
        a("v_lshlrev_b32 v7, 6, v7")
        a(f"v_lshl_add_u32 v{AB0}, v6, 4, v7")
        a(f"v_add_u32 v{AB0}, 16384, v{AB0}")
        a(f"v_xor_b32 v{AB1}, 32, v{AB0}")
    else:
        a("v_bfe_u32 v3, v2, 2, 2")
        a("v_lshl_add_u32 v3, v4, 3, v3")
        a("v_mul_u32_u24 v3, 384, v3")
        a("v_bfe_u32 v5, v2, 4, 1")
        a("v_lshl_add_u32 v3, v5, 5, v3")
        a("v_and_b32 v5, 3, v2")
        a("v_lshl_add_u32 v3, v5, 3, v3")
        a("s_mul_i32 s38, s37, 192")
        a("s_add_u32 s38, s38, 16384")
        a("v_add_u32 v3, s38, v3")
        a("v_bfe_u32 v5, v2, 3, 1")
        a("v_lshlrev_b32 v5, 6, v5")
        a(f"v_add_u32 v{AB0}, v3, v5")
        a(f"v_sub_u32 v{AB1}, v3, v5")
    for r in range(192):
        a(f"v_mov_b32 v{ACC+r}, 0")
    a("s_mov_b32 s40, 0")
    a(f"s_mov_b32 s41, {K1_N}")
    q = LdsQ(a)
    def rd_a(i, kk, step):
        q.issue(("A", i, step), f"ds_read_b128 {vr(FA+4*i,4)}, v{AA1 if kk else AA0} offset:{i*2048}")
    def rd_b(j, kk, setb, step):
        base = FB + 12 * setb + 4 * j
        if nt:
            q.issue(("B", j, step), f"ds_read_b128 {vr(base,4)}, v{AB1 if kk else AB0} offset:{j*2048}")
        else:
            for hh in range(2):
                areg = AB1 if (j & 1) else AB0
                q.issue(("B", j, step), f"ds_read_b64_tr_b16 {vr(base+2*hh,2)}, v{areg} offset:{kk*6144+hh*1536+j*64}")
    if not nt:
        a("s_cmp_eq_u32 s37, 1")
        a(f"s_cbranch_scc0 L_k1_noswap")
        a(f"v_mov_b32 v3, v{AB0}")
        a(f"v_mov_b32 v{AB0}, v{AB1}")
        a(f"v_mov_b32 v{AB1}, v3")
        a.label("L_k1_noswap")
    a("s_barrier")
    stamp(a, 1)
    def reads_for(kk, setb, step, slot):
        if slot == 0:
            rd_a(0, kk, step); rd_b(0, kk, setb, step); rd_b(1, kk, setb, step)
        elif slot == 1:
            rd_a(1, kk, step); rd_b(2, kk, setb, step)
        else:
            rd_a(slot, kk, step)
    for s in range(4):
        reads_for(0, 0, 0, s)
    def step(cur_set, nkk, stepid):
        for i in range(4):
            q.need([("A", i, stepid)] + ([("B", j, stepid) for j in range(3)] if i == 0 else []))
            for j in range(3):
                acc = ACC + 16 * (3 * i + j)
                a(f"v_mfma_f32_32x32x16_bf16 {vr(acc,16)}, {vr(FB+12*cur_set+4*j,4)}, {vr(FA+4*i,4)}, {vr(acc,16)}")
            reads_for(nkk, 1 - cur_set, stepid + 1, i)
    a.label(f"L_k1_{tg}_cloop")
    a.inloop = True
    q.done = 0
    step(0, 1, 0)
    a("s_add_u32 s40, s40, 1")
    a(f"s_cmp_eq_u32 s40, {K1_R}")
    a(f"s_cselect_b32 s42, {-(K1_R-1)*K1_S}, {K1_S}")
    a("s_cselect_b32 s40, 0, s40")
    for r in (AA0, AA1, AB0, AB1):
        a(f"v_add_u32 v{r}, s42, v{r}")
    step(1, 0, 1)
    a("s_sub_u32 s41, s41, 1")
    a("s_cmp_lg_u32 s41, 0")
    a("s_barrier")
    a(f"s_cbranch_scc1 L_k1_{tg}_cloop")
    a.inloop = False
    stamp(a, 2)
    a("s_waitcnt lgkmcnt(0)")
    a("s_nop 15")
    a("v_and_b32 v3, 31, v2")
    a("v_lshrrev_b32 v4, 5, v2")
    a("s_lshl_b32 s38, s36, 7")
    a("v_add_u32 v3, s38, v3")
    a("v_mul_u32_u24 v3, 400, v3")
    a("v_lshl_add_u32 v3, v4, 3, v3")
    a("s_mul_i32 s38, s37, 192")
    a("v_add_u32 v3, s38, v3")
    tmp = 8
    cnt = 0
    for i in range(4):
        for j in range(3):
            acc = ACC + 16 * (3 * i + j)
            for rq in range(4):
                t = tmp + 2 * (cnt % 16); cnt += 1
                a(f"v_cvt_pk_bf16_f32 v{t}, v{acc+4*rq}, v{acc+4*rq+1}")
                a(f"v_cvt_pk_bf16_f32 v{t+1}, v{acc+4*rq+2}, v{acc+4*rq+3}")
                a(f"ds_write_b64 v3, {vr(t,2)} offset:{i*12800+j*64+rq*16}")
    a("s_waitcnt lgkmcnt(0)")
    a(f"s_branch L_k1_{tg}_epi")
    a.label(f"L_k1_{tg}_loader")
    a("s_sub_u32 s36, s32, 4")
    VA = 8
    VB = 9
    a("v_lshrrev_b32 v3, 2, v2")
    a("v_and_b32 v4, 3, v2")
    a("v_bfe_u32 v5, v2, 4, 2")
    a("v_xor_b32 v4, v4, v5")
    a("s_lshl_b32 s37, s36, 6")
    a("s_add_u32 s37, s37, s33")
    a("v_add_u32 v5, s37, v3")
    a("v_mul_u32_u24 v5, 1152, v5")
    a(f"v_lshl_add_u32 v{VA}, v4, 4, v5")
    if nt:
        a("s_mul_i32 s37, s36, 48")
        a("s_add_u32 s37, s37, s34")
        a("v_add_u32 v5, s37, v3")
        a("v_mul_u32_u24 v5, 1152, v5")
        a(f"v_lshl_add_u32 v{VB}, v4, 4, v5")
    else:
        for p in range(3):
            a(f"v_add_u32 v3, {64*p}, v2")
            a("v_mul_u32_u24 v4, 2731, v3")
            a("v_lshrrev_b32 v4, 16, v4")
            a("v_mul_u32_u24 v5, 24, v4")
            a("v_sub_u32 v5, v3, v5")
            a("v_bfe_u32 v6, v4, 1, 1")
            a("v_lshlrev_b32 v6, 2, v6")
            a("v_xor_b32 v5, v5, v6")
            a("s_lshl_b32 s37, s36, 3")
            a("v_add_u32 v4, s37, v4")
            a("s_mov_b32 s37, 9216")
            a("v_mul_lo_u32 v4, v4, s37")
            a("v_lshl_add_u32 v4, v5, 4, v4")
            a("s_lshl_b32 s37, s34, 1")
            a(f"v_add_u32 v{VB+p}, s37, v4")
    a("s_lshl_b32 s38, s36, 12")
    a("s_mul_i32 s39, s36, 3072")
    a("s_add_u32 s39, s39, 16384")
    a("s_mov_b32 s40, 0")
    a("s_mov_b32 s43, 0")
    a("s_mov_b32 s44, 0")
    def issue():
        for qq in range(4):
            a(f"s_add_u32 m0, s38, {qq*1024}")
            a(f"s_add_u32 s45, s43, {qq*18432}")
            a(f"buffer_load_dwordx4 v{VA}, s[{SA}:{SA+3}], s45 offen lds")
        for p in range(3):
            a(f"s_add_u32 m0, s39, {p*1024}")
            if nt:
                a(f"s_add_u32 s45, s44, {p*18432}")
                a(f"buffer_load_dwordx4 v{VB}, s[{SB}:{SB+3}], s45 offen lds")
            else:
                a("s_nop 0")
                a(f"buffer_load_dwordx4 v{VB+p}, s[{SB}:{SB+3}], s44 offen lds")
        if not NOADV:
            a("s_add_u32 s43, s43, 64")
            a(f"s_add_u32 s44, s44, {64 if nt else 32*9216}")
        a("s_add_u32 s40, s40, 1")
        a(f"s_cmp_eq_u32 s40, {K1_R}")
        a(f"s_cselect_b32 s42, {-(K1_R-1)*K1_S}, {K1_S}")
        a("s_cselect_b32 s40, 0, s40")
        a("s_add_u32 s38, s38, s42")
        a("s_add_u32 s39, s39, s42")
    for st in range(4):
        issue()
    a("s_waitcnt vmcnt(14)")
    a("s_barrier")
    stamp(a, 1)
    a(f"s_mov_b32 s41, {K1_N-4}")
    a.label(f"L_k1_{tg}_lloop")
    issue()
    a("s_sub_u32 s41, s41, 1")
    a("s_cmp_lg_u32 s41, 0")
    a("s_waitcnt vmcnt(14)")
    a("s_barrier")
    a(f"s_cbranch_scc1 L_k1_{tg}_lloop")
    a("s_waitcnt vmcnt(7)")
    a("s_barrier")
    a("s_waitcnt vmcnt(0)")
    a("s_barrier")
    a("s_barrier")
    a("s_barrier")
    a.label(f"L_k1_{tg}_epi")
    a("s_barrier")
    stamp(a, 3)
    LA = 8
    GO = 11
    BI = 16
    D = 40
    for ph in range(3):
        a(f"v_add_u32 v3, {512*ph}, v0")
        a("v_mul_u32_u24 v4, 2731, v3")
        a("v_lshrrev_b32 v4, 16, v4")
        a("v_mul_u32_u24 v5, 24, v4")
        a("v_sub_u32 v5, v3, v5")
        a("v_mul_u32_u24 v6, 400, v4")
        a(f"v_lshl_add_u32 v{LA+ph}, v5, 4, v6")
        a("v_add_u32 v4, s33, v4")
        a(f"s_mov_b32 s37, {ldo}")
        a("v_mul_lo_u32 v4, v4, s37")
        a("v_lshl_add_u32 v4, v5, 4, v4")
        a("s_lshl_b32 s37, s34, 1")
        a(f"v_add_u32 v{GO+ph}, s37, v4")
        if not nt:
            a("v_lshlrev_b32 v5, 4, v5")
            a(f"buffer_load_dwordx4 {vr(D+4*ph,4)}, v5, s[{SBI}:{SBI+3}], s37 offen")
    a("s_mov_b32 s46, 0xffff0000")
    if not nt:
        a("s_waitcnt vmcnt(0)")
        for ph in range(3):
            for e in range(4):
                a(f"v_lshlrev_b32 v{BI+8*ph+2*e}, 16, v{D+4*ph+e}")
                a(f"v_and_b32 v{BI+8*ph+2*e+1}, s46, v{D+4*ph+e}")
        a("s_mov_b32 s47, 0xc0135761")
        a("s_mov_b32 s48, 0xbdd2d3e7")
    for t in range(4):
        a(f"s_mov_b32 s37, {t*64*ldo}")
        if t == 2:
            for ph in range(3):
                a(f"v_add_u32 v{LA+ph}, 51200, v{LA+ph}")
        for ph in range(3):
            DD = D + 16 * ph
            a(f"ds_read_b128 {vr(DD,4)}, v{LA+ph} offset:{(t%2)*25600}")
        for ph in range(3):
            DD = D + 16 * ph
            a(f"s_waitcnt lgkmcnt({2-ph})")
            if not nt:
                X = DD + 4
                for e in range(4):
                    a(f"v_lshlrev_b32 v{X+2*e}, 16, v{DD+e}")
                    a(f"v_and_b32 v{X+2*e+1}, s46, v{DD+e}")
                for e in range(8):
                    a(f"v_add_f32 v{X+e}, v{X+e}, v{BI+8*ph+e}")
                for e in range(4):
                    a(f"v_cvt_pk_bf16_f32 v{DD+e}, v{X+2*e}, v{X+2*e+1}")
                    a(f"v_lshlrev_b32 v{X+2*e}, 16, v{DD+e}")
                    a(f"v_and_b32 v{X+2*e+1}, s46, v{DD+e}")
                for e in range(8):
                    T0 = DD + 12 + (e & 3)
                    a(f"v_mul_f32 v{T0}, v{X+e}, v{X+e}")
                    a(f"v_mov_b32 v{DD+(e&3)}, s47")
                    a(f"v_fmac_f32 v{DD+(e&3)}, s48, v{T0}")
                    a(f"v_mul_f32 v{T0}, v{X+e}, v{DD+(e&3)}")
                    a(f"v_exp_f32 v{T0}, v{T0}")
                    a("s_nop 0")
                    a(f"v_add_f32 v{T0}, 1.0, v{T0}")
                    a(f"v_rcp_f32 v{T0}, v{T0}")
                    a("s_nop 0")
                    a(f"v_mul_f32 v{X+e}, v{X+e}, v{T0}")
                for e in range(4):
                    a(f"v_cvt_pk_bf16_f32 v{DD+e}, v{X+2*e}, v{X+2*e+1}")
            a(f"buffer_store_dwordx4 {vr(DD,4)}, v{GO+ph}, s[{SO}:{SO+3}], s37 offen")
    stamp(a, 4)
    a("s_waitcnt vmcnt(0)")
    stamp(a, 5)
    a("s_endpgm")

K2_S = 34816
K2_R = 4
def gen_k2(a):
    name = "gemm2_kernel"
    kernel_header(a, name)
    SA, SB, SO = 16, 20, 24
    a("s_cmp_ge_u32 s2, 256")
    a("s_cbranch_scc1 L_k2_done")
    stamp_init(a, 65536)
    a("s_load_dwordx4 s[4:7], s[0:1], 8")
    a("s_load_dwordx2 s[8:9], s[0:1], 64")
    a("s_load_dwordx2 s[12:13], s[0:1], 96")
    a("v_lshrrev_b32 v1, 6, v0")
    a("v_and_b32 v2, 63, v0")
    a("s_and_b32 s33, s2, 3")
    a("s_bfe_u32 s34, s2, 0x10002")
    a("s_lshr_b32 s35, s2, 3")
    a("v_readfirstlane_b32 s32, v1")
    a("s_lshr_b32 s36, s35, 2")
    a("s_lshl_b32 s34, s34, 3")
    a("s_add_u32 s34, s34, s36")
    a("s_lshl_b32 s34, s34, 7")
    a("s_and_b32 s35, s35, 3")
    a("s_mul_i32 s35, s35, 144")
    a("s_waitcnt lgkmcnt(0)")
    a("s_cmp_ge_u32 s33, 2")
    a("s_cbranch_scc1 L_k2_mlp")
    a("s_cmp_eq_u32 s33, 1")
    a("s_cselect_b32 s16, s6, s4")
    a("s_cselect_b32 s17, s7, s5")
    a(f"s_mov_b32 s18, {2048*2048*2}")
    a(f"s_cselect_b32 s36, {LY.B}, {LY.A}")
    a("s_add_u32 s20, s12, s36")
    a("s_addc_u32 s21, s13, 0")
    a(f"s_mov_b32 s22, {LY.SZ}")
    a("s_mov_b32 s46, 4096")
    a("s_mov_b32 s47, 32")
    a("s_branch L_k2_go")
    a.label("L_k2_mlp")
    a("s_cmp_eq_u32 s33, 3")
    a(f"s_cselect_b32 s36, {LY.H + 2304*2}, {LY.H}")
    a(f"s_cselect_b32 s18, {LY.HSZ - 2304*2}, {LY.HSZ}")
    a(f"s_cselect_b32 s37, {2304*1152}, 0")
    a(f"s_cselect_b32 s22, {2304*1152}, {4608*1152}")
    a("s_add_u32 s16, s12, s36")
    a("s_addc_u32 s17, s13, 0")
    a("s_add_u32 s20, s8, s37")
    a("s_addc_u32 s21, s9, 0")
    a("s_mov_b32 s46, 9216")
    a("s_mov_b32 s47, 36")
    a.label("L_k2_go")
    a("s_mov_b32 s19, 0x00020000")
    a("s_mov_b32 s23, 0x00020000")
    a(f"s_mul_i32 s36, s33, {LY.PSZ}")
    a(f"s_add_u32 s36, s36, {LY.P0}")
    a("s_add_u32 s24, s12, s36")
    a("s_addc_u32 s25, s13, 0")
    a(f"s_mov_b32 s26, {LY.PSZ}")
    a("s_mov_b32 s27, 0x00020000")
    stamp(a, 0)
    a("s_cmp_ge_u32 s32, 4")
    a("s_cbranch_scc1 L_k2_loader")
    ACC = 112
    FA = 8
    FB = 40
    AA, AP, AQ, AR = 76, 77, 78, 79
    a("s_lshr_b32 s36, s32, 1")
    a("s_and_b32 s37, s32, 1")
    a("v_and_b32 v3, 15, v2")
    a("v_lshrrev_b32 v4, 4, v2")
    a("s_lshl_b32 s38, s37, 2")
    a("v_add_u32 v5, s38, v4")
    a("v_lshrrev_b32 v6, 1, v3")
    a("v_xor_b32 v5, v5, v6")
    a("s_lshl_b32 s38, s36, 6")
    a("v_add_u32 v6, s38, v3")
    a("v_lshlrev_b32 v6, 7, v6")
    a(f"v_lshl_add_u32 v{AA}, v5, 4, v6")
    a("v_lshrrev_b32 v5, 2, v3")
    a("v_lshl_add_u32 v5, v4, 3, v5")
    a("s_lshl_b32 s38, s37, 5")
    a("v_add_u32 v5, s38, v5")
    a("v_mul_u32_u24 v5, 288, v5")
    a("v_and_b32 v6, 3, v3")
    a("v_lshl_add_u32 v5, v6, 3, v5")
    a(f"v_add_u32 v{AR}, 16384, v5")
    a("v_and_b32 v6, 1, v4")
    a("v_lshlrev_b32 v6, 7, v6")
    a(f"v_add_u32 v{AP}, v{AR}, v6")
    a(f"v_sub_u32 v{AQ}, v{AR}, v6")
    if PF2:
        a("s_lshr_b32 s49, s2, 3")
        a("s_cmp_eq_u32 s32, 0")
        a("s_cbranch_scc1 L_k2_pfa")
        a("s_cmp_eq_u32 s32, 1")
        a("s_cbranch_scc1 L_k2_pfb")
        a("s_mov_b32 s60, s16"); a("s_mov_b32 s61, s17"); a("s_mov_b32 s62, 0"); a("s_mov_b32 s63, 0x00020000")
        a("v_mov_b32 v81, 0")
        a("s_mov_b32 s65, 0")
        a("s_branch L_k2_pfgo")
        a.label("L_k2_pfa")
        a("s_mov_b32 s60, s16"); a("s_mov_b32 s61, s17"); a("s_mov_b32 s62, s18"); a("s_mov_b32 s63, 0x00020000")
        a("s_and_b32 s50, s49, 3")
        a("s_lshl_b32 s50, s50, 5")
        a("s_add_u32 s50, s50, s34")
        a("v_and_b32 v5, 31, v2")
        a("v_add_u32 v5, s50, v5")
        a("v_mul_lo_u32 v5, v5, s46")
        a("v_lshrrev_b32 v6, 5, v2")
        a(f"v_lshl_add_u32 v81, v6, {6 if PFH else 7}, v5")
        a(f"s_mov_b32 s65, {128 if PFH else 256}")
        a("s_branch L_k2_pfgo")
        a.label("L_k2_pfb")
        a("s_mov_b32 s60, s20"); a("s_mov_b32 s61, s21"); a("s_mov_b32 s62, s22"); a("s_mov_b32 s63, 0x00020000")
        a("v_mul_u32_u24 v5, 7282, v2")
        a("v_lshrrev_b32 v5, 16, v5")
        a("v_mul_u32_u24 v6, 9, v5")
        a("v_sub_u32 v6, v2, v6")
        a("v_and_b32 v7, 1, v5")
        a("v_lshrrev_b32 v5, 1, v5")
        if not PFH:
            a("v_lshl_add_u32 v7, v5, 6, v7")
        a("s_lshl_b32 s50, s49, 1")
        a("v_add_u32 v7, s50, v7")
        a("v_mul_u32_u24 v7, 1152, v7")
        a("v_lshl_add_u32 v81, v6, 7, v7")
        if PFH:
            a("v_lshl_add_u32 v81, v5, 6, v81")
        a("v_mov_b32 v6, 0x7ff00000")
        a("v_cmp_gt_u32 vcc, 36, v2")
        a("s_nop 1")
        a("v_cndmask_b32 v81, v6, v81, vcc")
        a(f"s_mov_b32 s65, {(64 if PFH else 128)*1152}")
        a.label("L_k2_pfgo")
        a(f"s_lshl_b32 s64, s65, {2 if PFH else 1}")
        for p in range(PF2 if PFH else PF2 // 2):
            a("buffer_load_dword v80, v81, s[60:63], s64 offen")
            a("s_add_u32 s64, s64, s65")
    for r in range(144):
        a(f"v_mov_b32 v{ACC+r}, 0")
    a("s_mov_b32 s40, 0")
    a("s_lshr_b32 s41, s47, 1")
    q = LdsQ(a)
    def rd_a(i, seta, st):
        q.issue(("A", i, st), f"ds_read_b128 {vr(FA+16*seta+4*i,4)}, v{AA} offset:{i*2048}")
    def rd_b(j, st):
        if j < 4:
            o0, o1 = (AP, 32*j), (AQ, 128 + 1152 + 32*j)
        elif j < 8:
            o0, o1 = (AQ, 32*j), (AP, 1152 - 128 + 32*j)
        else:
            o0, o1 = (AR, 256), (AR, 1152 + 256)
        q.issue(("B", j, st), f"ds_read_b64_tr_b16 {vr(FB+4*j,2)}, v{o0[0]} offset:{o0[1]}")
        q.issue(("B", j, st), f"ds_read_b64_tr_b16 {vr(FB+4*j+2,2)}, v{o1[0]} offset:{o1[1]}")
    def advance():
        a("s_add_u32 s40, s40, 1")
        a(f"s_cmp_eq_u32 s40, {K2_R}")
        a(f"s_cselect_b32 s42, {-(K2_R-1)*K2_S}, {K2_S}")
        a("s_cselect_b32 s40, 0, s40")
        for r in (AA, AP, AQ, AR):
            a(f"v_add_u32 v{r}, s42, v{r}")
    a("s_barrier")
    stamp(a, 1)
    for j in range(9):
        if j < 4:
            rd_a(j, 0, 0)
        rd_b(j, 0)
    advance()
    def stage(cur, st):
        for j in range(9):
            q.need([("B", j, st)] + ([("A", i, st) for i in range(4)] if j == 0 else []))
            for i in range(4):
                acc = ACC + 4 * (9 * i + j)
                a(f"v_mfma_f32_16x16x32_bf16 {vr(acc,4)}, {vr(FB+4*j,4)}, {vr(FA+16*cur+4*i,4)}, {vr(acc,4)}")
            if j < 4:
                rd_a(j, 1 - cur, st + 1)
            rd_b(j, st + 1)
        advance()
    a.label("L_k2_cloop")
    a.inloop = True
    q.done = 0
    if PF2:
        a("buffer_load_dword v80, v81, s[60:63], s64 offen")
        a("s_add_u32 s64, s64, s65")
    stage(0, 0)
    a("s_barrier")
    if PF2 and PFH:
        a("buffer_load_dword v80, v81, s[60:63], s64 offen")
        a("s_add_u32 s64, s64, s65")
    stage(1, 1)
    a("s_sub_u32 s41, s41, 1")
    a("s_cmp_lg_u32 s41, 0")
    a("s_barrier")
    a("s_cbranch_scc1 L_k2_cloop")
    a.inloop = False
    a("s_waitcnt lgkmcnt(0)")
    a("s_nop 15")
    stamp(a, 2)
    a("v_and_b32 v3, 15, v2")
    a("v_lshrrev_b32 v4, 4, v2")
    a("s_lshl_b32 s38, s36, 6")
    a("v_add_u32 v3, s38, v3")
    a("v_mul_u32_u24 v3, 592, v3")
    a("v_lshl_add_u32 v3, v4, 4, v3")
    a("s_mul_i32 s38, s37, 75776")
    a("v_add_u32 v3, s38, v3")
    for i in range(4):
        for j in range(9):
            a(f"ds_write_b128 v3, {vr(ACC+4*(9*i+j),4)} offset:{i*9472+j*64}")
    a("s_waitcnt lgkmcnt(0)")
    a("s_branch L_k2_epi")
    a.label("L_k2_loader")
    a("s_sub_u32 s36, s32, 4")
    VA0, VA1 = 8, 9
    VB = 10
    a("v_lshrrev_b32 v3, 3, v2")
    a("v_and_b32 v4, 7, v2")
    a("v_lshrrev_b32 v5, 4, v2")
    a("v_xor_b32 v4, v4, v5")
    a("s_lshl_b32 s37, s36, 5")
    a("s_add_u32 s37, s37, s34")
    a("v_add_u32 v5, s37, v3")
    a("v_mul_lo_u32 v5, v5, s46")
    a(f"v_lshl_add_u32 v{VA0}, v4, 4, v5")
    a("v_xor_b32 v4, 4, v4")
    a(f"v_lshl_add_u32 v{VA1}, v4, 4, v5")
    for p in range(5):
        a(f"v_add_u32 v3, {64*p}, v2")
        a("v_mul_u32_u24 v4, 3641, v3")
        a("v_lshrrev_b32 v4, 16, v4")
        a("v_mul_u32_u24 v5, 18, v4")
        a("v_sub_u32 v5, v3, v5")
        a("v_bfe_u32 v6, v4, 2, 1")
        a("v_bfe_u32 v7, v4, 3, 1")
        a("v_xor_b32 v6, v6, v7")
        a("v_lshlrev_b32 v6, 3, v6")
        a("v_xor_b32 v6, v5, v6")
        a("v_cmp_gt_u32 vcc, 16, v5")
        a("s_nop 1")
        a("v_cndmask_b32 v5, v5, v6, vcc")
        a("s_lshl_b32 s37, s36, 4")
        a("v_add_u32 v4, s37, v4")
        a("v_mul_u32_u24 v4, 1152, v4")
        a("v_lshl_add_u32 v4, v5, 4, v4")
        a("s_lshl_b32 s37, s35, 1")
        a(f"v_add_u32 v{VB+p}, s37, v4")
    a("s_lshl_b32 s38, s36, 12")
    a("s_mul_i32 s39, s36, 4608")
    a("s_add_u32 s39, s39, 16384")
    a("s_mov_b32 s40, 0")
    a("s_mov_b32 s43, 0")
    a("s_mov_b32 s44, 0")
    if ROT:
        a("s_lshr_b32 s50, s34, 7")
        a(f"s_mul_i32 s50, s50, {ROT}")
        a("s_lshl_b32 s43, s50, 7")
        a(f"s_mul_i32 s44, s50, {64*1152}")
        a("s_lshl_b32 s51, s47, 7")
    a("s_lshl_b32 s48, s46, 3")
    def issue():
        for qq in range(4):
            a(f"s_add_u32 m0, s38, {qq*1024}")
            if qq == 0:
                a("s_mov_b32 s45, s43")
            else:
                a("s_add_u32 s45, s45, s48")
            a(f"buffer_load_dwordx4 v{VA1 if qq & 1 else VA0}, s[{SA}:{SA+3}], s45 offen lds")
        for p in range(5):
            a(f"s_add_u32 m0, s39, {p*1024}")
            if p == 4:
                a("s_mov_b64 exec, 0xffffffff")
            else:
                a("s_nop 0")
            a(f"buffer_load_dwordx4 v{VB+p}, s[{SB}:{SB+3}], s44 offen lds")
        a("s_mov_b64 exec, -1")
        if not NOADV:
            a("s_add_u32 s43, s43, 128")
            a(f"s_add_u32 s44, s44, {64*1152}")
            if ROT:
                a("s_cmp_eq_u32 s43, s51")
                a("s_cselect_b32 s43, 0, s43")
                a("s_cselect_b32 s44, 0, s44")
        a("s_add_u32 s40, s40, 1")
        a(f"s_cmp_eq_u32 s40, {K2_R}")
        a(f"s_cselect_b32 s42, {-(K2_R-1)*K2_S}, {K2_S}")
        a("s_cselect_b32 s40, 0, s40")
        a("s_add_u32 s38, s38, s42")
        a("s_add_u32 s39, s39, s42")
    for st in range(3):
        issue()
    a("s_waitcnt vmcnt(9)")
    a("s_barrier")
    a("s_sub_u32 s41, s47, 3")
    a.label("L_k2_lloop")
    issue()
    a("s_sub_u32 s41, s41, 1")
    a("s_cmp_lg_u32 s41, 0")
    a("s_waitcnt vmcnt(9)")
    a("s_barrier")
    a("s_cbranch_scc1 L_k2_lloop")
    a("s_waitcnt vmcnt(0)")
    a("s_barrier")
    a("s_barrier")
    a("s_barrier")
    a.label("L_k2_epi")
    a("s_load_dwordx2 s[4:5], s[0:1], 0")
    a("s_load_dwordx4 s[8:11], s[0:1], 72")
    a("s_load_dwordx2 s[6:7], s[0:1], 88")
    a("s_barrier")
    stamp(a, 3)
    a("s_mov_b32 s38, 58255")
    for it in range(9):
        b = 8 + 12 * (it % 3)
        a(f"v_add_u32 v{b}, {it*512}, v0")
        a(f"v_mul_lo_u32 v{b+1}, v{b}, s38")
        a(f"v_lshrrev_b32 v{b+1}, 21, v{b+1}")
        a(f"v_mul_u32_u24 v{b+2}, 36, v{b+1}")
        a(f"v_sub_u32 v{b+2}, v{b}, v{b+2}")
        a(f"v_mul_u32_u24 v{b+3}, 592, v{b+1}")
        a(f"v_lshl_add_u32 v{b+3}, v{b+2}, 4, v{b+3}")
        a(f"ds_read_b128 {vr(b+4,4)}, v{b+3}")
        a(f"v_add_u32 v{b+3}, 75776, v{b+3}")
        a(f"ds_read_b128 {vr(b+8,4)}, v{b+3}")
        a(f"v_add_u32 v{b+1}, s34, v{b+1}")
        a(f"v_mul_u32_u24 v{b+1}, 2304, v{b+1}")
        a(f"v_lshl_add_u32 v{b+1}, v{b+2}, 4, v{b+1}")
        if it % 3 == 2:
            for k in range(3):
                bb = 8 + 12 * k
                a(f"s_waitcnt lgkmcnt({4-2*k})")
                for e in range(4):
                    a(f"v_add_f32 v{bb+4+e}, v{bb+4+e}, v{bb+8+e}")
                if it == 2 and k == 0:
                    a("s_lshl_b32 s39, s35, 2")
                a(f"buffer_store_dwordx4 {vr(bb+4,4)}, v{bb+1}, s[{SO}:{SO+3}], s39 offen sc1")
            a("s_nop 1")
    a("s_waitcnt vmcnt(0) lgkmcnt(0)")
    a("s_barrier")
    stamp(a, 4)
    srd(a, 52, 4, 5, LY.SZ)
    srd(a, 56, 8, 9, 576 * 2)
    srd(a, 60, 10, 11, LY.SZ)
    srd(a, 64, 6, 7, 256)
    srd(a, 68, 12, 13, 4 * LY.PSZ, LY.P0)
    FI = 8
    for it in range(3):
        b = FI + 40 * it
        a(f"v_add_u32 v{b}, {it*512}, v0")
        a(f"v_mul_lo_u32 v{b+1}, v{b}, s38")
        a(f"v_lshrrev_b32 v{b+1}, 21, v{b+1}")
        a(f"v_mul_u32_u24 v{b+2}, 36, v{b+1}")
        a(f"v_sub_u32 v{b+2}, v{b}, v{b+2}")
        a("s_lshl_b32 s39, s33, 5")
        a(f"v_add_u32 v{b+1}, s39, v{b+1}")
        a(f"v_mul_u32_u24 v{b+3}, 592, v{b+1}")
        a(f"v_lshl_add_u32 v{b+3}, v{b+2}, 4, v{b+3}")
        a(f"v_add_u32 v{b+1}, s34, v{b+1}")
        a(f"v_mul_u32_u24 v{b+1}, 576, v{b+1}")
        a(f"v_lshl_add_u32 v{b+1}, v{b+2}, 2, v{b+1}")
        a(f"v_add_u32 v{b+1}, s35, v{b+1}")
        if it == 2:
            a(f"v_mov_b32 v{b+4}, 0x3fffffff")
            a(f"v_cmp_gt_u32 vcc, 1152, v{b}")
            a("s_nop 1")
            a(f"v_cndmask_b32 v{b+1}, v{b+4}, v{b+1}, vcc")
            a(f"v_mov_b32 v{b+4}, 0")
            a(f"v_cndmask_b32 v{b+3}, v{b+4}, v{b+3}, vcc")
        a(f"v_lshlrev_b32 v{b+4}, 1, v{b+1}")
        a(f"v_lshlrev_b32 v{b+5}, 2, v{b+1}")
        a(f"v_lshlrev_b32 v{b+2}, 3, v{b+2}")
        a("s_lshl_b32 s39, s35, 1")
        a(f"buffer_load_dwordx2 {vr(b+6,2)}, v{b+4}, s[52:55], 0 offen")
        a(f"buffer_load_dwordx2 {vr(b+8,2)}, v{b+2}, s[56:59], s39 offen")
        a(f"ds_read_b128 {vr(b+12,4)}, v{b+3}")
        a(f"ds_read_b128 {vr(b+16,4)}, v{b+3} offset:0")
    a("s_lshr_b32 s39, s34, 5")
    a("s_lshr_b32 s40, s2, 3")
    a("s_and_b32 s40, s40, 3")
    a("s_add_u32 s39, s39, s40")
    a("s_lshl_b32 s39, s39, 2")
    a("s_cmp_lg_u32 s32, 0")
    a("s_cbranch_scc1 L_k2_wait")
    a("v_mov_b32 v200, 1")
    a("v_mov_b32 v201, s39")
    a("s_mov_b64 exec, 1")
    a("buffer_atomic_add v200, v201, s[64:67], 0 offen")
    a.label("L_k2_poll")
    a("buffer_load_dword v202, v201, s[64:67], 0 offen sc1")
    a("s_waitcnt vmcnt(0)")
    a("v_readfirstlane_b32 s40, v202")
    a("s_cmp_ge_u32 s40, 4")
    a("s_cbranch_scc1 L_k2_polldone")
    a("s_sleep 2")
    a("s_branch L_k2_poll")
    a.label("L_k2_polldone")
    a("s_mov_b64 exec, -1")
    a.label("L_k2_wait")
    a("s_barrier")
    stamp(a, 5)
    for it in range(3):
        b = FI + 40 * it
        for p in range(4):
            a(f"s_mov_b32 s39, {p*LY.PSZ}")
            a(f"buffer_load_dwordx4 {vr(b+20+4*p,4)}, v{b+5}, s[68:71], s39 offen sc1")
    a("s_mov_b32 s14, 0xffff0000")
    a("s_mov_b32 s15, 0xbfb8aa3b")
    def rpair(r0, r1, t):
        a(f"v_cvt_pk_bf16_f32 v{t}, v{r0}, v{r1}")
        a(f"v_lshlrev_b32 v{r0}, 16, v{t}")
        a(f"v_and_b32 v{r1}, s14, v{t}")
    for it in range(3):
        b = FI + 40 * it
        a(f"s_waitcnt vmcnt({8-4*it})")
        X, BB = b + 12, b + 16
        a("s_waitcnt lgkmcnt(0)")
        for e in range(2):
            a(f"v_lshlrev_b32 v{X+2*e}, 16, v{b+6+e}")
            a(f"v_and_b32 v{X+2*e+1}, s14, v{b+6+e}")
            a(f"v_lshlrev_b32 v{BB+2*e}, 16, v{b+8+e}")
            a(f"v_and_b32 v{BB+2*e+1}, s14, v{b+8+e}")
        SRE, SIM, ML, MH = b + 20, b + 24, b + 28, b + 32
        T0, T1 = b + 36, b + 37
        for e in range(0, 4, 2):
            rpair(SRE+e, SRE+e+1, T0)
            rpair(SIM+e, SIM+e+1, T1)
            for k in range(2):
                a(f"v_sub_f32 v{SRE+e+k}, v{SRE+e+k}, v{SIM+e+k}")
                a(f"v_add_f32 v{ML+e+k}, v{ML+e+k}, v{MH+e+k}")
            rpair(SRE+e, SRE+e+1, T0)
            rpair(ML+e, ML+e+1, T1)
            for k in range(2):
                a(f"v_add_f32 v{ML+e+k}, v{ML+e+k}, v{BB+e+k}")
            rpair(ML+e, ML+e+1, T1)
            for k in range(2):
                a(f"v_mul_f32 v{b+38+k}, s15, v{ML+e+k}")
                a(f"v_exp_f32 v{b+38+k}, v{b+38+k}")
            a("s_nop 0")
            for k in range(2):
                a(f"v_add_f32 v{b+38+k}, 1.0, v{b+38+k}")
                a(f"v_rcp_f32 v{b+38+k}, v{b+38+k}")
            a("s_nop 0")
            for k in range(2):
                a(f"v_mul_f32 v{ML+e+k}, v{ML+e+k}, v{b+38+k}")
            rpair(ML+e, ML+e+1, T1)
            for k in range(2):
                a(f"v_mul_f32 v{SRE+e+k}, v{SRE+e+k}, v{ML+e+k}")
            rpair(SRE+e, SRE+e+1, T0)
            for k in range(2):
                a(f"v_add_f32 v{SRE+e+k}, v{SRE+e+k}, v{X+e+k}")
            a(f"v_cvt_pk_bf16_f32 v{b+6+e//2}, v{SRE+e}, v{SRE+e+1}")
        a(f"buffer_store_dwordx2 {vr(b+6,2)}, v{b+4}, s[60:63], 0 offen")
    a.label("L_k2_done")
    a("s_endpgm")
    return kernel_desc(name, 256)

def gen_k3(a):
    name = "final_kernel"
    kernel_header(a, name)
    a("s_cmp_ge_u32 s2, 576")
    a("s_cbranch_scc1 L_k3_done")
    a("s_load_dwordx2 s[4:5], s[0:1], 0")
    a("s_load_dwordx4 s[8:11], s[0:1], 72")
    a("s_load_dwordx2 s[12:13], s[0:1], 96")
    a("s_lshl_b32 s3, s2, 8")
    a("v_add_u32 v1, s3, v0")
    a("s_mov_b32 s3, 59652324")
    a("v_mul_hi_u32 v2, v1, s3")
    a("v_mul_u32_u24 v2, 72, v2")
    a("v_sub_u32 v2, v1, v2")
    a("v_lshlrev_b32 v2, 4, v2")
    a("v_lshlrev_b32 v3, 4, v1")
    a("v_lshlrev_b32 v4, 5, v1")
    a("s_waitcnt lgkmcnt(0)")
    srd(a, 16, 4, 5, LY.SZ)
    srd(a, 20, 8, 9, 576 * 2)
    srd(a, 24, 10, 11, LY.SZ)
    srd(a, 28, 12, 13, 4 * LY.PSZ, LY.P0)
    a("buffer_load_dwordx4 v[8:11], v3, s[16:19], 0 offen")
    a("buffer_load_dwordx4 v[12:15], v2, s[20:23], 0 offen")
    for p in range(4):
        a(f"s_mov_b32 s3, {p*LY.PSZ}")
        a(f"buffer_load_dwordx4 {vr(16+8*p,4)}, v4, s[28:31], s3 offen")
        a(f"buffer_load_dwordx4 {vr(20+8*p,4)}, v4, s[28:31], s3 offen offset:16")
    a("s_mov_b32 s14, 0xffff0000")
    a("s_mov_b32 s15, 0xbfb8aa3b")
    a("s_waitcnt vmcnt(0)")
    X, BB = 48, 56
    for e in range(4):
        a(f"v_lshlrev_b32 v{X+2*e}, 16, v{8+e}")
        a(f"v_and_b32 v{X+2*e+1}, s14, v{8+e}")
        a(f"v_lshlrev_b32 v{BB+2*e}, 16, v{12+e}")
        a(f"v_and_b32 v{BB+2*e+1}, s14, v{12+e}")
    def rpair(r0, r1, t):
        a(f"v_cvt_pk_bf16_f32 v{t}, v{r0}, v{r1}")
        a(f"v_lshlrev_b32 v{r0}, 16, v{t}")
        a(f"v_and_b32 v{r1}, s14, v{t}")
    SRE, SIM, ML, MH = 16, 24, 32, 40
    for e in range(0, 8, 2):
        rpair(SRE+e, SRE+e+1, 64)
        rpair(SIM+e, SIM+e+1, 65)
        for k in range(2):
            a(f"v_sub_f32 v{SRE+e+k}, v{SRE+e+k}, v{SIM+e+k}")
            a(f"v_add_f32 v{ML+e+k}, v{ML+e+k}, v{MH+e+k}")
        rpair(SRE+e, SRE+e+1, 64)
        rpair(ML+e, ML+e+1, 65)
        for k in range(2):
            a(f"v_add_f32 v{ML+e+k}, v{ML+e+k}, v{BB+e+k}")
        rpair(ML+e, ML+e+1, 65)
        for k in range(2):
            a(f"v_mul_f32 v{66+k}, s15, v{ML+e+k}")
            a(f"v_exp_f32 v{66+k}, v{66+k}")
        a("s_nop 0")
        for k in range(2):
            a(f"v_add_f32 v{66+k}, 1.0, v{66+k}")
            a(f"v_rcp_f32 v{66+k}, v{66+k}")
        a("s_nop 0")
        for k in range(2):
            a(f"v_mul_f32 v{ML+e+k}, v{ML+e+k}, v{66+k}")
        rpair(ML+e, ML+e+1, 65)
        for k in range(2):
            a(f"v_mul_f32 v{SRE+e+k}, v{SRE+e+k}, v{ML+e+k}")
        rpair(SRE+e, SRE+e+1, 64)
        for k in range(2):
            a(f"v_add_f32 v{SRE+e+k}, v{SRE+e+k}, v{X+e+k}")
        a(f"v_cvt_pk_bf16_f32 v{8+e//2}, v{SRE+e}, v{SRE+e+1}")
    a("buffer_store_dwordx4 v[8:11], v3, s[24:27], 0 offen")
    a.label("L_k3_done")
    a("s_endpgm")
    return kernel_desc(name, 72)

def main():
    a = Asm()
    hdr = open(f"cdna_kernels/{NAME}.s.ref").read().split("; Override launch")[0]
    descs = [gen_ln(a), gen_k1(a), gen_k2(a)]
    out = hdr
    out += "; @launch kernel=ln_kernel grid=(256,1,1) block=(256,1,1) lds=0\n"
    out += f"; @launch kernel=gemm1_kernel grid=(240,1,1) block=(512,1,1) lds={K1_S*K1_R}\n"
    out += f"; @launch kernel=gemm2_kernel grid=(256,1,1) block=(512,1,1) lds={max(K2_S*K2_R, 2*75776)}\n"
    out += '.amdgcn_target "amdgcn-amd-amdhsa--gfx950"\n'
    out += "\n".join(a.lines) + "\n"
    out += "\n".join(descs)
    dst = sys.argv[1] if len(sys.argv) > 1 else f"cdna_kernels/{NAME}.s"
    open(dst, "w").write(out)
    print("wrote", dst, len(out))

main()
```

```python
import sys, re, os
NOADV = int(os.environ.get('NOADV', '0'))
NOCOMP = int(os.environ.get('NOCOMP', '0'))
NOLOAD = int(os.environ.get('NOLOAD', '0'))
NOSTORE = int(os.environ.get('NOSTORE', '0'))
STAMP = int(os.environ.get('STAMP', '0'))
PF2 = int(os.environ.get('PF2', '10'))
ROT = int(os.environ.get('ROT', '0'))
PFH = int(os.environ.get('PFH', '0'))
import layout as LY

NAME = "recurrent_scan__spectral_fnet__mixer_channel_mlp__prompt"

class Asm:
    def __init__(self):
        self.lines = []
        self.uid = 0
        self.inloop = False
    def __call__(self, s):
        if NOCOMP and (s.startswith("v_mfma") or s.startswith("ds_read_b64_tr") or (s.startswith("ds_read_b128") and self.inloop)):
            return
        if NOLOAD and s.endswith(" lds"):
            return
        if NOSTORE and s.startswith("buffer_store_dwordx4") and "s[24:27]" in s and "v3," not in s:
            return
        m = re.match(r"s_cselect_b32 (s\d+), (-?\d+), (-?\d+)$", s)
        if m and not (-16 <= int(m.group(2)) <= 64) and not (-16 <= int(m.group(3)) <= 64):
            self.lines.append(f"    s_mov_b32 {m.group(1)}, {m.group(3)}")
            self.lines.append(f"    s_cselect_b32 {m.group(1)}, {m.group(2)}, {m.group(1)}")
            return
        self.lines.append("    " + s)
    def label(self, l):
        self.lines.append(l + ":")
    def raw(self, s):
        self.lines.append(s)
    def c(self, s):
        self.lines.append("    ; " + s)
    def newlabel(self, p):
        self.uid += 1
        return f"L_{p}_{self.uid}"

def vr(b, n=1):
    return f"v{b}" if n == 1 else f"v[{b}:{b+n-1}]"
def sr(b, n=1):
    return f"s{b}" if n == 1 else f"s[{b}:{b+n-1}]"

def srd(a, d, base_lo, base_hi, nbytes, off=0):
    if off:
        a(f"s_add_u32 s{d}, s{base_lo}, {off}")
        a(f"s_addc_u32 s{d+1}, s{base_hi}, 0")
    else:
        a(f"s_mov_b32 s{d}, s{base_lo}")
        a(f"s_mov_b32 s{d+1}, s{base_hi}")
    a(f"s_mov_b32 s{d+2}, {nbytes}")
    a(f"s_mov_b32 s{d+3}, 0x00020000")

def stamp_init(a, koff=0):
    if not STAMP: return
    a("s_load_dwordx2 s[80:81], s[0:1], 96")
    a("s_waitcnt lgkmcnt(0)")
    a(f"s_add_u32 s80, s80, {48*1024*1024 + koff}")
    a("s_addc_u32 s81, s81, 0")
    a("s_mov_b32 s82, 65536")
    a("s_mov_b32 s83, 0x00020000")
def stamp(a, slot):
    if not STAMP: return
    a("s_memrealtime s[92:93]")
    a("s_waitcnt lgkmcnt(0)")
    a("s_lshl_b32 s93, s32, 5")
    a("s_lshl_b32 s94, s2, 8")
    a("s_add_u32 s93, s93, s94")
    a(f"s_add_u32 s93, s93, {slot*4}")
    a("v_mov_b32 v254, s92")
    a("v_mov_b32 v255, s93")
    a("buffer_store_dword v254, v255, s[80:83], 0 offen")

def kernel_header(a, name):
    a.raw(".text")
    a.raw(f".globl {name}")
    a.raw(".p2align 8")
    a.raw(f".type {name},@function")
    a.label(name)

def kernel_desc(name, vgpr, sgpr=96):
    acc = (vgpr + 3) // 4 * 4
    return f""".section .rodata,"a"
.p2align 6
.amdhsa_kernel {name}
  .amdhsa_next_free_vgpr {vgpr}
  .amdhsa_next_free_sgpr {sgpr}
  .amdhsa_accum_offset {acc}
  .amdhsa_group_segment_fixed_size 0
  .amdhsa_kernarg_size 104
  .amdhsa_user_sgpr_count 2
  .amdhsa_user_sgpr_kernarg_segment_ptr 1
  .amdhsa_system_sgpr_workgroup_id_x 1
.end_amdhsa_kernel
"""

class LdsQ:
    def __init__(self, a):
        self.a = a
        self.q = []
        self.done = 0
    def issue(self, tag, text):
        self.a(text)
        self.q.append(tag)
    def need(self, tags):
        idx = -1
        for t in tags:
            for p in range(len(self.q) - 1, -1, -1):
                if self.q[p] == t:
                    idx = max(idx, p)
                    break
            else:
                raise Exception(f"tag {t} never issued")
        if idx < self.done:
            return
        n = len(self.q) - 1 - idx
        n = min(n, 15)
        self.a(f"s_waitcnt lgkmcnt({n})")
        self.done = len(self.q) - n

def gen_ln(a):
    name = "ln_kernel"
    kernel_header(a, name)
    a("s_cmp_ge_u32 s2, 256")
    a("s_cbranch_scc1 L_ln_done")
    a("s_load_dwordx2 s[4:5], s[0:1], 0")
    a("s_load_dwordx2 s[6:7], s[0:1], 96")
    a("v_lshrrev_b32 v1, 5, v0")
    a("s_lshl_b32 s3, s2, 3")
    a("v_add_u32 v1, s3, v1")
    a("v_and_b32 v2, 31, v0")
    a("v_mul_u32_u24 v1, 1152, v1")
    a("v_lshl_add_u32 v1, v2, 2, v1")
    a("s_waitcnt lgkmcnt(0)")
    srd(a, 8, 4, 5, LY.SZ)
    srd(a, 12, 6, 7, 2 * LY.SZ)
    srd(a, 20, 6, 7, 64 * 128, LY.FLG)
    a("s_lshl_b32 s3, s2, 8")
    a("v_add_u32 v3, s3, v0")
    a("v_mov_b32 v4, 0")
    a("buffer_store_byte v4, v3, s[20:23], 0 offen")
    P = 10
    F = 20
    for j in range(9):
        a(f"buffer_load_dword v{P+j}, v1, s[8:11], 0 offen offset:{j*128}")
    a("s_mov_b32 s16, 0xffff0000")
    a("s_mov_b32 s17, 0x3ae38e39")
    a("s_mov_b32 s18, 0x3727c5ac")
    a("s_waitcnt vmcnt(0)")
    for j in range(9):
        a(f"v_lshlrev_b32 v{F+2*j}, 16, v{P+j}")
        a(f"v_and_b32 v{F+2*j+1}, s16, v{P+j}")
    S, T, M, D, R, Q, E = 40, 41, 42, 43, 44, 45, 46
    G = 50
    def reduce32(v):
        for sh in (8, 4, 2, 1):
            a("s_nop 1")
            a(f"v_add_f32_dpp v{v}, v{v}, v{v} row_ror:{sh} row_mask:0xf bank_mask:0xf")
        a(f"ds_swizzle_b32 v{T}, v{v} offset:0x401F")
        a("s_waitcnt lgkmcnt(0)")
        a(f"v_add_f32 v{v}, v{v}, v{T}")
    def rbf(v):
        a(f"v_cvt_pk_bf16_f32 v{v}, v{v}, v{v}")
        a(f"v_lshlrev_b32 v{v}, 16, v{v}")
    def ln(outoff):
        a(f"v_add_f32 v{S}, v{F}, v{F+1}")
        for i in range(2, 18):
            a(f"v_add_f32 v{S}, v{S}, v{F+i}")
        reduce32(S)
        a(f"v_mul_f32 v{M}, s17, v{S}")
        for i in range(18):
            a(f"v_sub_f32 v{G+i}, v{F+i}, v{M}")
        a(f"v_mul_f32 v{S}, v{G}, v{G}")
        for i in range(1, 18):
            a(f"v_fmac_f32 v{S}, v{G+i}, v{G+i}")
        reduce32(S)
        a(f"v_mul_f32 v{D}, s17, v{S}")
        rbf(D)
        a(f"v_add_f32 v{D}, s18, v{D}")
        rbf(D)
        a(f"v_sqrt_f32 v{D}, v{D}")
        a("s_nop 0")
        rbf(D)
        rbf(M)
        a(f"v_rcp_f32 v{R}, v{D}")
        for i in range(18):
            a(f"v_sub_f32 v{G+i}, v{F+i}, v{M}")
        for j in range(9):
            a(f"v_cvt_pk_bf16_f32 v{P+j}, v{G+2*j}, v{G+2*j+1}")
            a(f"v_lshlrev_b32 v{G+2*j}, 16, v{P+j}")
            a(f"v_and_b32 v{G+2*j+1}, s16, v{P+j}")
        for i in range(18):
            a(f"v_mul_f32 v{Q}, v{G+i}, v{R}")
            a(f"v_fma_f32 v{E}, -v{Q}, v{D}, v{G+i}")
            a(f"v_fma_f32 v{F+i}, v{E}, v{R}, v{Q}")
        for j in range(9):
            a(f"v_cvt_pk_bf16_f32 v{P+j}, v{F+2*j}, v{F+2*j+1}")
            a(f"v_lshlrev_b32 v{F+2*j}, 16, v{P+j}")
            a(f"v_and_b32 v{F+2*j+1}, s16, v{P+j}")
        a(f"s_mov_b32 s19, {outoff}")
        for j in range(9):
            a(f"buffer_store_dword v{P+j}, v1, s[12:15], s19 offen offset:{j*128}")
    ln(LY.XN)
    a("s_nop 1")
    ln(LY.Y)
    a.label("L_ln_done")
    a("s_endpgm")
    return kernel_desc(name, 72)

K1_AS = 32768
K1_BS = 12288
K1_B0 = 3 * K1_AS
K1_LDS = K1_B0 + 5 * K1_BS
K1_N = 18
def gen_k1(a):
    name = "gemm1_kernel"
    kernel_header(a, name)
    a("s_cmp_ge_u32 s2, 256")
    a("s_cbranch_scc1 L_k1_done")
    a("s_cmp_ge_u32 s2, 240")
    a("s_cbranch_scc1 L_k1_copy")
    stamp_init(a)
    a("s_load_dwordx4 s[4:7], s[0:1], 24")
    a("s_load_dwordx4 s[8:11], s[0:1], 48")
    a("s_load_dwordx2 s[12:13], s[0:1], 96")
    a("v_lshrrev_b32 v1, 6, v0")
    a("v_and_b32 v2, 63, v0")
    a("s_and_b32 s33, s2, 7")
    a("s_lshr_b32 s34, s2, 3")
    a("s_mul_i32 s33, s33, 30")
    a("s_add_u32 s34, s34, s33")
    a("s_and_b32 s33, s34, 7")
    a("s_lshr_b32 s34, s34, 3")
    a("v_readfirstlane_b32 s32, v1")
    a("s_lshl_b32 s33, s33, 8")
    a("s_waitcnt lgkmcnt(0)")
    a("s_cmp_ge_u32 s34, 24")
    a("s_cbranch_scc1 L_k1_nt")
    gen_k1_path(a, False)
    a.label("L_k1_nt")
    gen_k1_path(a, True)
    a.label("L_k1_copy")
    a("s_load_dwordx2 s[8:9], s[0:1], 64")
    a("s_load_dwordx2 s[12:13], s[0:1], 96")
    a("s_sub_u32 s33, s2, 240")
    a(f"s_mul_i32 s33, s33, {288*72}")
    a("v_add_u32 v1, s33, v0")
    a("s_waitcnt lgkmcnt(0)")
    srd(a, 16, 8, 9, 4608 * 1152)
    srd(a, 20, 12, 13, 4608 * 1152, LY.W2R)
    a("s_mov_b32 s34, 59652324")
    a("s_mov_b32 s41, 5")
    a.label("L_k1_copy_loop")
    for u in range(8):
        b = 8 + 8 * u
        a(f"v_add_u32 v{b}, {u*512}, v1")
        a(f"v_lshlrev_b32 v{b+1}, 4, v{b}")
        a(f"buffer_load_dwordx4 {vr(b+4,4)}, v{b+1}, s[16:19], 0 offen")
        a(f"v_mul_hi_u32 v{b+1}, v{b}, s34")
        a(f"v_mul_u32_u24 v{b+2}, 72, v{b+1}")
        a(f"v_sub_u32 v{b+2}, v{b}, v{b+2}")
        a(f"v_mul_u32_u24 v{b+3}, 3641, v{b+2}")
        a(f"v_lshrrev_b32 v{b+3}, 16, v{b+3}")
        a(f"v_mul_u32_u24 v{b}, 18, v{b+3}")
        a(f"v_sub_u32 v{b+2}, v{b+2}, v{b}")
        a(f"v_mul_u32_u24 v{b+1}, 288, v{b+1}")
        a(f"v_lshl_add_u32 v{b+1}, v{b+2}, 4, v{b+1}")
        a(f"s_mov_b32 s35, {4608*288}")
        a(f"v_mul_lo_u32 v{b+3}, v{b+3}, s35")
        a(f"v_add_u32 v{b+1}, v{b+1}, v{b+3}")
    for u in range(8):
        b = 8 + 8 * u
        a(f"s_waitcnt vmcnt({7-u+u})") if False else None
    a("s_waitcnt vmcnt(0)")
    for u in range(8):
        b = 8 + 8 * u
        a(f"buffer_store_dwordx4 {vr(b+4,4)}, v{b+1}, s[20:23], 0 offen")
    a("v_add_u32 v1, 4096, v1")
    a("s_sub_u32 s41, s41, 1")
    a("s_cmp_lg_u32 s41, 0")
    a("s_cbranch_scc1 L_k1_copy_loop")
    a("v_cmp_gt_u32 vcc, 256, v0")
    a("s_and_saveexec_b64 s[36:37], vcc")
    a("s_cbranch_execz L_k1_done")
    b = 8
    a(f"v_lshlrev_b32 v{b+1}, 4, v1")
    a(f"buffer_load_dwordx4 {vr(b+4,4)}, v{b+1}, s[16:19], 0 offen")
    a(f"v_mul_hi_u32 v{b+1}, v1, s34")
    a(f"v_mul_u32_u24 v{b+2}, 72, v{b+1}")
    a(f"v_sub_u32 v{b+2}, v1, v{b+2}")
    a(f"v_mul_u32_u24 v{b+3}, 3641, v{b+2}")
    a(f"v_lshrrev_b32 v{b+3}, 16, v{b+3}")
    a(f"v_mul_u32_u24 v{b}, 18, v{b+3}")
    a(f"v_sub_u32 v{b+2}, v{b+2}, v{b}")
    a(f"v_mul_u32_u24 v{b+1}, 288, v{b+1}")
    a(f"v_lshl_add_u32 v{b+1}, v{b+2}, 4, v{b+1}")
    a(f"s_mov_b32 s35, {4608*288}")
    a(f"v_mul_lo_u32 v{b+3}, v{b+3}, s35")
    a(f"v_add_u32 v{b+1}, v{b+1}, v{b+3}")
    a("s_waitcnt vmcnt(0)")
    a(f"buffer_store_dwordx4 {vr(b+4,4)}, v{b+1}, s[20:23], 0 offen")
    a.label("L_k1_done")
    a("s_endpgm")
    return kernel_desc(name, 256)

def gen_k1_path(a, nt):
    tg = "nt" if nt else "nn"
    SA, SB, SO, SBI = 16, 20, 24, 28
    if nt:
        srd(a, SA, 12, 13, LY.SZ, LY.XN)
        a("s_sub_u32 s34, s34, 24")
        a("s_cmp_ge_u32 s34, 3")
        a("s_cselect_b32 s20, s6, s4")
        a("s_cselect_b32 s21, s7, s5")
        a(f"s_mov_b32 s22, {576*576*2}")
        a("s_mov_b32 s23, 0x00020000")
        a(f"s_cselect_b32 s35, {LY.B}, {LY.A}")
        a("s_add_u32 s24, s12, s35")
        a("s_addc_u32 s25, s13, 0")
        a(f"s_mov_b32 s26, {LY.SZ}")
        a("s_mov_b32 s27, 0x00020000")
        a("s_cmp_ge_u32 s34, 3")
        a("s_cselect_b32 s35, 3, 0")
        a("s_sub_u32 s34, s34, s35")
        a("s_mul_i32 s34, s34, 192")
        ldo = 288
    else:
        srd(a, SA, 12, 13, LY.SZ, LY.Y)
        srd(a, SB, 8, 9, 576 * 4608 * 2)
        srd(a, SO, 12, 13, LY.HSZ, LY.H)
        srd(a, SBI, 10, 11, 4608 * 2)
        a("s_mul_i32 s34, s34, 192")
        ldo = 9216
    stamp(a, 0)
    a("s_cmp_ge_u32 s32, 4")
    a(f"s_cbranch_scc1 L_k1_{tg}_loader")
    ACC = 64
    FA = 8
    FB = 24
    AA = [[48, 49], [50, 51]]
    AB0, AB1 = 52, 53
    a("s_lshr_b32 s36, s32, 1")
    a("s_and_b32 s37, s32, 1")
    a("v_and_b32 v3, 31, v2")
    a("v_lshrrev_b32 v4, 5, v2")
    a("v_bfe_u32 v5, v2, 1, 3")
    a("v_xor_b32 v6, v4, v5")
    a("s_lshl_b32 s38, s36, 7")
    a("v_add_u32 v7, s38, v3")
    a("v_lshlrev_b32 v7, 7, v7")
    a(f"v_lshl_add_u32 v{AA[0][0]}, v6, 4, v7")
    a(f"v_xor_b32 v{AA[0][1]}, 32, v{AA[0][0]}")
    a(f"v_xor_b32 v{AA[1][0]}, 64, v{AA[0][0]}")
    a(f"v_xor_b32 v{AA[1][1]}, 96, v{AA[0][0]}")
    if nt:
        a("v_bfe_u32 v5, v2, 2, 2")
        a("v_xor_b32 v6, v4, v5")
        a("s_mul_i32 s38, s37, 96")
        a("v_add_u32 v7, s38, v3")
        a("v_lshlrev_b32 v7, 6, v7")
        a(f"v_lshl_add_u32 v{AB0}, v6, 4, v7")
        a(f"v_add_u32 v{AB0}, {K1_B0}, v{AB0}")
        a(f"v_xor_b32 v{AB1}, 32, v{AB0}")
    else:
        a("v_bfe_u32 v3, v2, 2, 2")
        a("v_lshl_add_u32 v3, v4, 3, v3")
        a("v_mul_u32_u24 v3, 384, v3")
        a("v_bfe_u32 v5, v2, 4, 1")
        a("v_lshl_add_u32 v3, v5, 5, v3")
        a("v_and_b32 v5, 3, v2")
        a("v_lshl_add_u32 v3, v5, 3, v3")
        a("s_mul_i32 s38, s37, 192")
        a(f"s_add_u32 s38, s38, {K1_B0}")
        a("v_add_u32 v3, s38, v3")
        a("v_bfe_u32 v5, v2, 3, 1")
        a("v_lshlrev_b32 v5, 6, v5")
        a(f"v_add_u32 v{AB0}, v3, v5")
        a(f"v_sub_u32 v{AB1}, v3, v5")
        a("s_cmp_eq_u32 s37, 1")
        a(f"s_cbranch_scc0 L_k1_noswap")
        a(f"v_mov_b32 v3, v{AB0}")
        a(f"v_mov_b32 v{AB0}, v{AB1}")
        a(f"v_mov_b32 v{AB1}, v3")
        a.label("L_k1_noswap")
    if nt:
        for r in range(192):
            a(f"v_mov_b32 v{ACC+r}, 0")
    else:
        a("s_mul_i32 s38, s37, 96")
        a("s_add_u32 s38, s38, s34")
        a("s_lshl_b32 s38, s38, 1")
        a("v_lshlrev_b32 v3, 3, v4")
        for j in range(3):
            for rq in range(4):
                a(f"buffer_load_dwordx2 {vr(8+2*(4*j+rq),2)}, v3, s[{SBI}:{SBI+3}], s38 offen offset:{j*64+rq*16}")
        a("s_mov_b32 s38, 0xffff0000")
        a("s_waitcnt vmcnt(0)")
        for j in range(3):
            for rq in range(4):
                src = 8 + 2 * (4 * j + rq)
                d = ACC + 16 * j + 4 * rq
                a(f"v_lshlrev_b32 v{d}, 16, v{src}")
                a(f"v_and_b32 v{d+1}, s38, v{src}")
                a(f"v_lshlrev_b32 v{d+2}, 16, v{src+1}")
                a(f"v_and_b32 v{d+3}, s38, v{src+1}")
        for i in range(1, 4):
            for r in range(48):
                a(f"v_mov_b32 v{ACC+48*i+r}, v{ACC+r}")
    a("s_mov_b32 s40, 0")
    a("s_mov_b32 s43, 0")
    a(f"s_mov_b32 s41, {K1_N//2}")
    q = LdsQ(a)
    def rd_a(i, h, kk, step):
        q.issue(("A", i, step), f"ds_read_b128 {vr(FA+4*i,4)}, v{AA[h][kk]} offset:{i*4096}")
    def rd_b(j, kk, setb, step):
        base = FB + 12 * setb + 4 * j
        if nt:
            q.issue(("B", j, step), f"ds_read_b128 {vr(base,4)}, v{AB1 if kk else AB0} offset:{j*2048}")
        else:
            for hh in range(2):
                areg = AB1 if (j & 1) else AB0
                q.issue(("B", j, step), f"ds_read_b64_tr_b16 {vr(base+2*hh,2)}, v{areg} offset:{kk*6144+hh*1536+j*64}")
    a("s_barrier")
    stamp(a, 1)
    def reads_for(h, kk, setb, step, slot):
        if slot == 0:
            rd_a(0, h, kk, step); rd_b(0, kk, setb, step); rd_b(1, kk, setb, step)
        elif slot == 1:
            rd_a(1, h, kk, step); rd_b(2, kk, setb, step)
        else:
            rd_a(slot, h, kk, step)
    for sl in range(4):
        reads_for(0, 0, 0, 0, sl)
    def step(cur_set, nh, nkk, stepid):
        for i in range(4):
            q.need([("A", i, stepid)] + ([("B", j, stepid) for j in range(3)] if i == 0 else []))
            for j in range(3):
                acc = ACC + 16 * (3 * i + j)
                a(f"v_mfma_f32_32x32x16_bf16 {vr(acc,16)}, {vr(FB+12*cur_set+4*j,4)}, {vr(FA+4*i,4)}, {vr(acc,16)}")
            reads_for(nh, nkk, 1 - cur_set, stepid + 1, i)
    def adv_b():
        a("s_add_u32 s40, s40, 1")
        a("s_cmp_eq_u32 s40, 5")
        a(f"s_cselect_b32 s42, {-4*K1_BS}, {K1_BS}")
        a("s_cselect_b32 s40, 0, s40")
        for r in (AB0, AB1):
            a(f"v_add_u32 v{r}, s42, v{r}")
    def adv_a():
        a("s_add_u32 s43, s43, 1")
        a("s_cmp_eq_u32 s43, 3")
        a(f"s_cselect_b32 s42, {-2*K1_AS}, {K1_AS}")
        a("s_cselect_b32 s43, 0, s43")
        for r in (AA[0][0], AA[0][1], AA[1][0], AA[1][1]):
            a(f"v_add_u32 v{r}, s42, v{r}")
    a.label(f"L_k1_{tg}_cloop")
    a.inloop = True
    q.done = 0
    step(0, 0, 1, 0)
    adv_b()
    step(1, 1, 0, 1)
    a("s_barrier")
    step(0, 1, 1, 2)
    adv_b()
    adv_a()
    step(1, 0, 0, 3)
    a("s_sub_u32 s41, s41, 1")
    a("s_cmp_lg_u32 s41, 0")
    a("s_barrier")
    a(f"s_cbranch_scc1 L_k1_{tg}_cloop")
    a.inloop = False
    stamp(a, 2)
    a("s_waitcnt lgkmcnt(0)")
    a("s_nop 15")
    a("v_and_b32 v3, 31, v2")
    a("v_lshrrev_b32 v4, 5, v2")
    a("s_lshl_b32 s38, s36, 7")
    a("v_add_u32 v3, s38, v3")
    a("v_mul_u32_u24 v3, 400, v3")
    a("v_lshl_add_u32 v3, v4, 3, v3")
    a("s_mul_i32 s38, s37, 192")
    a("v_add_u32 v3, s38, v3")
    tmp = 8
    cnt = 0
    for i in range(4):
        for j in range(3):
            acc = ACC + 16 * (3 * i + j)
            for rq in range(4):
                t = tmp + 2 * (cnt % 16); cnt += 1
                a(f"v_cvt_pk_bf16_f32 v{t}, v{acc+4*rq}, v{acc+4*rq+1}")
                a(f"v_cvt_pk_bf16_f32 v{t+1}, v{acc+4*rq+2}, v{acc+4*rq+3}")
                a(f"ds_write_b64 v3, {vr(t,2)} offset:{i*12800+j*64+rq*16}")
    a("s_waitcnt lgkmcnt(0)")
    a(f"s_branch L_k1_{tg}_epi")
    a.label(f"L_k1_{tg}_loader")
    a("s_sub_u32 s36, s32, 4")
    VA0, VA1 = 8, 9
    VB = 10
    a("v_lshrrev_b32 v3, 3, v2")
    a("v_and_b32 v4, 7, v2")
    a("v_lshrrev_b32 v5, 4, v2")
    a("v_xor_b32 v4, v4, v5")
    a("s_lshl_b32 s37, s36, 6")
    a("s_add_u32 s37, s37, s33")
    a("v_add_u32 v5, s37, v3")
    a("v_mul_u32_u24 v5, 1152, v5")
    a(f"v_lshl_add_u32 v{VA0}, v4, 4, v5")
    a("v_xor_b32 v4, 4, v4")
    a(f"v_lshl_add_u32 v{VA1}, v4, 4, v5")
    if nt:
        a("v_lshrrev_b32 v3, 2, v2")
        a("v_and_b32 v4, 3, v2")
        a("v_bfe_u32 v5, v2, 4, 2")
        a("v_xor_b32 v4, v4, v5")
        a("s_mul_i32 s37, s36, 48")
        a("s_add_u32 s37, s37, s34")
        a("v_add_u32 v5, s37, v3")
        a("v_mul_u32_u24 v5, 1152, v5")
        a(f"v_lshl_add_u32 v{VB}, v4, 4, v5")
    else:
        for p in range(3):
            a(f"v_add_u32 v3, {64*p}, v2")
            a("v_mul_u32_u24 v4, 2731, v3")
            a("v_lshrrev_b32 v4, 16, v4")
            a("v_mul_u32_u24 v5, 24, v4")
            a("v_sub_u32 v5, v3, v5")
            a("v_bfe_u32 v6, v4, 1, 1")
            a("v_lshlrev_b32 v6, 2, v6")
            a("v_xor_b32 v5, v5, v6")
            a("s_lshl_b32 s37, s36, 3")
            a("v_add_u32 v4, s37, v4")
            a("s_mov_b32 s37, 9216")
            a("v_mul_lo_u32 v4, v4, s37")
            a("v_lshl_add_u32 v4, v5, 4, v4")
            a("s_lshl_b32 s37, s34, 1")
            a(f"v_add_u32 v{VB+p}, s37, v4")
    a("s_lshl_b32 s38, s36, 13")
    a("s_mul_i32 s39, s36, 3072")
    a(f"s_add_u32 s39, s39, {K1_B0}")
    a("s_mov_b32 s40, 0")
    a("s_mov_b32 s46, 0")
    a("s_mov_b32 s43, 0")
    a("s_mov_b32 s44, 0")
    def issue_a():
        for qq in range(8):
            a(f"s_add_u32 m0, s38, {qq*1024}")
            a(f"s_add_u32 s45, s43, {qq*9216}")
            a(f"buffer_load_dwordx4 v{VA1 if qq & 1 else VA0}, s[{SA}:{SA+3}], s45 offen lds")
        if not NOADV:
            a("s_add_u32 s43, s43, 128")
        a("s_add_u32 s46, s46, 1")
        a("s_cmp_eq_u32 s46, 3")
        a(f"s_cselect_b32 s42, {-2*K1_AS}, {K1_AS}")
        a("s_cselect_b32 s46, 0, s46")
        a("s_add_u32 s38, s38, s42")
    def issue_b():
        for p in range(3):
            a(f"s_add_u32 m0, s39, {p*1024}")
            if nt:
                a(f"s_add_u32 s45, s44, {p*18432}")
                a(f"buffer_load_dwordx4 v{VB}, s[{SB}:{SB+3}], s45 offen lds")
            else:
                a("s_nop 0")
                a(f"buffer_load_dwordx4 v{VB+p}, s[{SB}:{SB+3}], s44 offen lds")
        if not NOADV:
            a(f"s_add_u32 s44, s44, {64 if nt else 32*9216}")
        a("s_add_u32 s40, s40, 1")
        a("s_cmp_eq_u32 s40, 5")
        a(f"s_cselect_b32 s42, {-4*K1_BS}, {K1_BS}")
        a("s_cselect_b32 s40, 0, s40")
        a("s_add_u32 s39, s39, s42")
    issue_a(); issue_b(); issue_b(); issue_a(); issue_b(); issue_b()
    a("s_waitcnt vmcnt(14)")
    a("s_barrier")
    stamp(a, 1)
    a("s_mov_b32 s41, 7")
    a.label(f"L_k1_{tg}_lloop")
    issue_b(); issue_a()
    a("s_waitcnt vmcnt(14)")
    a("s_barrier")
    issue_b()
    a("s_sub_u32 s41, s41, 1")
    a("s_cmp_lg_u32 s41, 0")
    a("s_waitcnt vmcnt(14)")
    a("s_barrier")
    a(f"s_cbranch_scc1 L_k1_{tg}_lloop")
    a("s_waitcnt vmcnt(3)")
    a("s_barrier")
    a("s_waitcnt vmcnt(0)")
    a("s_barrier")
    a("s_barrier")
    a("s_barrier")
    a.label(f"L_k1_{tg}_epi")
    LA = 8
    GO = 11
    BI = 16
    D = 40
    for ph in range(3):
        a(f"v_add_u32 v3, {512*ph}, v0")
        a("v_mul_u32_u24 v4, 2731, v3")
        a("v_lshrrev_b32 v4, 16, v4")
        a("v_mul_u32_u24 v5, 24, v4")
        a("v_sub_u32 v5, v3, v5")
        a("v_mul_u32_u24 v6, 400, v4")
        a(f"v_lshl_add_u32 v{LA+ph}, v5, 4, v6")
        a("v_add_u32 v4, s33, v4")
        if nt:
            a("v_lshl_add_u32 v5, v5, 3, s34")
            a("v_mul_u32_u24 v6, 7282, v5")
            a("v_lshrrev_b32 v6, 20, v6")
            a("v_mul_u32_u24 v7, 144, v6")
            a("v_sub_u32 v5, v5, v7")
            a("v_mul_u32_u24 v4, 288, v4")
            a("v_lshl_add_u32 v4, v5, 1, v4")
            a(f"s_mov_b32 s37, {2048*288}")
            a("v_mul_lo_u32 v6, v6, s37")
            a(f"v_add_u32 v{GO+ph}, v4, v6")
        else:
            a(f"s_mov_b32 s37, {ldo}")
            a("v_mul_lo_u32 v4, v4, s37")
            a("v_lshl_add_u32 v4, v5, 4, v4")
            a("s_lshl_b32 s37, s34, 1")
            a(f"v_add_u32 v{GO+ph}, s37, v4")
    a("s_mov_b32 s46, 0xffff0000")
    if not nt:
        a("v_mov_b32 v14, 0xc0135761")
        a("s_mov_b32 s48, 0xbdd2d3e7")
    a("s_barrier")
    stamp(a, 3)
    a("s_mov_b32 s37, 0")
    a("s_mov_b32 s41, 4")
    a.label(f"L_k1_{tg}_eloop")
    for ph in range(3):
        DD = D + 24 * ph
        a(f"ds_read_b128 {vr(DD,4)}, v{LA+ph}")
        a(f"v_add_u32 v{LA+ph}, 25600, v{LA+ph}")
    for ph in range(3):
        DD = D + 24 * ph
        a(f"s_waitcnt lgkmcnt({2-ph})")
        if not nt:
            X = DD + 4; T = DD + 12
            for e in range(4):
                a(f"v_lshlrev_b32 v{X+2*e}, 16, v{DD+e}")
                a(f"v_and_b32 v{X+2*e+1}, s46, v{DD+e}")
            for e in range(8):
                a(f"v_mul_f32 v{T+e}, v{X+e}, v{X+e}")
            for e in range(8):
                a(f"v_fma_f32 v{T+e}, v{T+e}, s48, v14")
            for e in range(8):
                a(f"v_mul_f32 v{T+e}, v{X+e}, v{T+e}")
            for e in range(8):
                a(f"v_exp_f32 v{T+e}, v{T+e}")
            for e in range(8):
                a(f"v_add_f32 v{T+e}, 1.0, v{T+e}")
            for e in range(8):
                a(f"v_rcp_f32 v{T+e}, v{T+e}")
            for e in range(8):
                a(f"v_mul_f32 v{X+e}, v{X+e}, v{T+e}")
            for e in range(4):
                a(f"v_cvt_pk_bf16_f32 v{DD+e}, v{X+2*e}, v{X+2*e+1}")
        a(f"buffer_store_dwordx4 {vr(DD,4)}, v{GO+ph}, s[{SO}:{SO+3}], s37 offen")
    a(f"s_add_u32 s37, s37, {64*ldo}")
    a("s_sub_u32 s41, s41, 1")
    a("s_cmp_lg_u32 s41, 0")
    a(f"s_cbranch_scc1 L_k1_{tg}_eloop")
    stamp(a, 4)
    stamp(a, 5)
    a("s_endpgm")

K2_S = 34816
K2_R = 4
def gen_k2(a):
    name = "gemm2_kernel"
    kernel_header(a, name)
    SA, SB, SO = 16, 20, 24
    a("s_cmp_ge_u32 s2, 256")
    a("s_cbranch_scc1 L_k2_done")
    stamp_init(a, 65536)
    a("s_load_dwordx4 s[4:7], s[0:1], 8")
    a("s_load_dwordx2 s[8:9], s[0:1], 64")
    a("s_load_dwordx2 s[12:13], s[0:1], 96")
    a("v_lshrrev_b32 v1, 6, v0")
    a("v_and_b32 v2, 63, v0")
    a("s_and_b32 s33, s2, 3")
    a("s_bfe_u32 s34, s2, 0x10002")
    a("s_lshr_b32 s35, s2, 3")
    a("v_readfirstlane_b32 s32, v1")
    a("s_lshr_b32 s36, s35, 2")
    a("s_lshl_b32 s34, s34, 3")
    a("s_add_u32 s34, s34, s36")
    a("s_lshl_b32 s34, s34, 7")
    a("s_and_b32 s35, s35, 3")
    a("s_mul_i32 s35, s35, 144")
    a("s_waitcnt lgkmcnt(0)")
    a("s_cmp_ge_u32 s33, 2")
    a("s_cbranch_scc1 L_k2_mlp")
    a("s_cmp_eq_u32 s33, 1")
    a("s_cselect_b32 s16, s6, s4")
    a("s_cselect_b32 s17, s7, s5")
    a(f"s_mov_b32 s18, {2048*2048*2}")
    a(f"s_cselect_b32 s36, {LY.B}, {LY.A}")
    a(f"s_mul_i32 s37, s35, {2048*2}")
    a("s_add_u32 s36, s36, s37")
    a("s_add_u32 s20, s12, s36")
    a("s_addc_u32 s21, s13, 0")
    a(f"s_mov_b32 s22, {2048*288}")
    a("s_mov_b32 s46, 4096")
    a("s_mov_b32 s47, 32")
    a("s_branch L_k2_go")
    a.label("L_k2_mlp")
    a("s_cmp_eq_u32 s33, 3")
    a(f"s_cselect_b32 s36, {LY.H + 2304*2}, {LY.H}")
    a(f"s_cselect_b32 s18, {LY.HSZ - 2304*2}, {LY.HSZ}")
    a(f"s_cselect_b32 s37, {2304*288 + LY.W2R}, {LY.W2R}")
    a(f"s_mov_b32 s22, {2304*288}")
    a("s_add_u32 s16, s12, s36")
    a("s_addc_u32 s17, s13, 0")
    a(f"s_mul_i32 s36, s35, {4608*2}")
    a("s_add_u32 s37, s37, s36")
    a("s_add_u32 s20, s12, s37")
    a("s_addc_u32 s21, s13, 0")
    a("s_mov_b32 s46, 9216")
    a("s_mov_b32 s47, 36")
    a.label("L_k2_go")
    a("s_mov_b32 s19, 0x00020000")
    a("s_mov_b32 s23, 0x00020000")
    a(f"s_mul_i32 s36, s33, {LY.PSZ}")
    a(f"s_add_u32 s36, s36, {LY.P0}")
    a("s_add_u32 s24, s12, s36")
    a("s_addc_u32 s25, s13, 0")
    a(f"s_mov_b32 s26, {LY.PSZ}")
    a("s_mov_b32 s27, 0x00020000")
    stamp(a, 0)
    a("s_cmp_ge_u32 s32, 4")
    a("s_cbranch_scc1 L_k2_loader")
    ACC = 112
    FA = 8
    FB = 40
    AA, AP, AQ, AR = 76, 77, 78, 79
    a("s_lshr_b32 s36, s32, 1")
    a("s_and_b32 s37, s32, 1")
    a("v_and_b32 v3, 15, v2")
    a("v_lshrrev_b32 v4, 4, v2")
    a("s_lshl_b32 s38, s37, 2")
    a("v_add_u32 v5, s38, v4")
    a("v_lshrrev_b32 v6, 1, v3")
    a("v_xor_b32 v5, v5, v6")
    a("s_lshl_b32 s38, s36, 6")
    a("v_add_u32 v6, s38, v3")
    a("v_lshlrev_b32 v6, 7, v6")
    a(f"v_lshl_add_u32 v{AA}, v5, 4, v6")
    a("v_lshrrev_b32 v5, 2, v3")
    a("v_lshl_add_u32 v5, v4, 3, v5")
    a("s_lshl_b32 s38, s37, 5")
    a("v_add_u32 v5, s38, v5")
    a("v_mul_u32_u24 v5, 288, v5")
    a("v_and_b32 v6, 3, v3")
    a("v_lshl_add_u32 v5, v6, 3, v5")
    a(f"v_add_u32 v{AR}, 16384, v5")
    a("v_and_b32 v6, 1, v4")
    a("v_lshlrev_b32 v6, 7, v6")
    a(f"v_add_u32 v{AP}, v{AR}, v6")
    a(f"v_sub_u32 v{AQ}, v{AR}, v6")
    if PF2:
        a("s_lshr_b32 s49, s2, 3")
        a("s_cmp_eq_u32 s32, 0")
        a("s_cbranch_scc1 L_k2_pfa")
        a("s_cmp_eq_u32 s32, 1")
        a("s_cbranch_scc1 L_k2_pfb")
        a("s_mov_b32 s60, s16"); a("s_mov_b32 s61, s17"); a("s_mov_b32 s62, 0"); a("s_mov_b32 s63, 0x00020000")
        a("v_mov_b32 v81, 0")
        a("s_mov_b32 s65, 0")
        a("s_branch L_k2_pfgo")
        a.label("L_k2_pfa")
        a("s_mov_b32 s60, s16"); a("s_mov_b32 s61, s17"); a("s_mov_b32 s62, s18"); a("s_mov_b32 s63, 0x00020000")
        a("s_and_b32 s50, s49, 3")
        a("s_lshl_b32 s50, s50, 5")
        a("s_add_u32 s50, s50, s34")
        a("v_and_b32 v5, 31, v2")
        a("v_add_u32 v5, s50, v5")
        a("v_mul_lo_u32 v5, v5, s46")
        a("v_lshrrev_b32 v6, 5, v2")
        a(f"v_lshl_add_u32 v81, v6, {6 if PFH else 7}, v5")
        a(f"s_mov_b32 s65, {128 if PFH else 256}")
        a("s_branch L_k2_pfgo")
        a.label("L_k2_pfb")
        a("s_mov_b32 s60, s20"); a("s_mov_b32 s61, s21"); a("s_mov_b32 s62, s22"); a("s_mov_b32 s63, 0x00020000")
        a("v_mul_u32_u24 v5, 3641, v2")
        a("v_lshrrev_b32 v5, 16, v5")
        a("v_mul_u32_u24 v6, 18, v5")
        a("v_sub_u32 v6, v2, v6")
        a("v_mul_u32_u24 v5, 18432, v5")
        a("v_lshl_add_u32 v81, v6, 7, v5")
        a("s_lshr_b32 s50, s49, 2")
        a("s_mul_i32 s50, s50, 2304")
        a("v_add_u32 v81, s50, v81")
        a("v_mov_b32 v6, 0x7ff00000")
        a("v_cmp_gt_u32 vcc, 36, v2")
        a("s_nop 1")
        a("v_cndmask_b32 v81, v6, v81, vcc")
        a(f"s_mov_b32 s65, {2*18432}")
        a.label("L_k2_pfgo")
        a(f"s_lshl_b32 s64, s65, {2 if PFH else 1}")
        for p in range(PF2 if PFH else PF2 // 2):
            a("buffer_load_dword v80, v81, s[60:63], s64 offen")
            a("s_add_u32 s64, s64, s65")
    for r in range(144):
        a(f"v_mov_b32 v{ACC+r}, 0")
    a("s_mov_b32 s40, 0")
    a("s_lshr_b32 s41, s47, 1")
    q = LdsQ(a)
    def rd_a(i, seta, st):
        q.issue(("A", i, st), f"ds_read_b128 {vr(FA+16*seta+4*i,4)}, v{AA} offset:{i*2048}")
    def rd_b(j, st):
        if j < 4:
            o0, o1 = (AP, 32*j), (AQ, 128 + 1152 + 32*j)
        elif j < 8:
            o0, o1 = (AQ, 32*j), (AP, 1152 - 128 + 32*j)
        else:
            o0, o1 = (AR, 256), (AR, 1152 + 256)
        q.issue(("B", j, st), f"ds_read_b64_tr_b16 {vr(FB+4*j,2)}, v{o0[0]} offset:{o0[1]}")
        q.issue(("B", j, st), f"ds_read_b64_tr_b16 {vr(FB+4*j+2,2)}, v{o1[0]} offset:{o1[1]}")
    def advance():
        a("s_add_u32 s40, s40, 1")
        a(f"s_cmp_eq_u32 s40, {K2_R}")
        a(f"s_cselect_b32 s42, {-(K2_R-1)*K2_S}, {K2_S}")
        a("s_cselect_b32 s40, 0, s40")
        for r in (AA, AP, AQ, AR):
            a(f"v_add_u32 v{r}, s42, v{r}")
    a("s_barrier")
    stamp(a, 1)
    for j in range(9):
        if j < 4:
            rd_a(j, 0, 0)
        rd_b(j, 0)
    advance()
    def stage(cur, st):
        for j in range(9):
            q.need([("B", j, st)] + ([("A", i, st) for i in range(4)] if j == 0 else []))
            for i in range(4):
                acc = ACC + 4 * (9 * i + j)
                a(f"v_mfma_f32_16x16x32_bf16 {vr(acc,4)}, {vr(FB+4*j,4)}, {vr(FA+16*cur+4*i,4)}, {vr(acc,4)}")
            if j < 4:
                rd_a(j, 1 - cur, st + 1)
            rd_b(j, st + 1)
        advance()
    a.label("L_k2_cloop")
    a.inloop = True
    q.done = 0
    if PF2:
        a("buffer_load_dword v80, v81, s[60:63], s64 offen")
        a("s_add_u32 s64, s64, s65")
    stage(0, 0)
    a("s_barrier")
    if PF2 and PFH:
        a("buffer_load_dword v80, v81, s[60:63], s64 offen")
        a("s_add_u32 s64, s64, s65")
    stage(1, 1)
    a("s_sub_u32 s41, s41, 1")
    a("s_cmp_lg_u32 s41, 0")
    a("s_barrier")
    a("s_cbranch_scc1 L_k2_cloop")
    a.inloop = False
    a("s_waitcnt lgkmcnt(0)")
    a("s_nop 15")
    stamp(a, 2)
    a("v_and_b32 v3, 15, v2")
    a("v_lshrrev_b32 v4, 4, v2")
    a("s_lshl_b32 s38, s36, 6")
    a("v_add_u32 v3, s38, v3")
    a("v_mul_u32_u24 v3, 592, v3")
    a("v_lshl_add_u32 v3, v4, 4, v3")
    a("s_mul_i32 s38, s37, 75776")
    a("v_add_u32 v3, s38, v3")
    for i in range(4):
        for j in range(9):
            a(f"ds_write_b128 v3, {vr(ACC+4*(9*i+j),4)} offset:{i*9472+j*64}")
    a("s_waitcnt lgkmcnt(0)")
    a("s_branch L_k2_epi")
    a.label("L_k2_loader")
    a("s_sub_u32 s36, s32, 4")
    VA0, VA1 = 8, 9
    VB = 10
    a("v_lshrrev_b32 v3, 3, v2")
    a("v_and_b32 v4, 7, v2")
    a("v_lshrrev_b32 v5, 4, v2")
    a("v_xor_b32 v4, v4, v5")
    a("s_lshl_b32 s37, s36, 5")
    a("s_add_u32 s37, s37, s34")
    a("v_add_u32 v5, s37, v3")
    a("v_mul_lo_u32 v5, v5, s46")
    a(f"v_lshl_add_u32 v{VA0}, v4, 4, v5")
    a("v_xor_b32 v4, 4, v4")
    a(f"v_lshl_add_u32 v{VA1}, v4, 4, v5")
    for p in range(5):
        a(f"v_add_u32 v3, {64*p}, v2")
        a("v_mul_u32_u24 v4, 3641, v3")
        a("v_lshrrev_b32 v4, 16, v4")
        a("v_mul_u32_u24 v5, 18, v4")
        a("v_sub_u32 v5, v3, v5")
        a("v_bfe_u32 v6, v4, 2, 1")
        a("v_bfe_u32 v7, v4, 3, 1")
        a("v_xor_b32 v6, v6, v7")
        a("v_lshlrev_b32 v6, 3, v6")
        a("v_xor_b32 v6, v5, v6")
        a("v_cmp_gt_u32 vcc, 16, v5")
        a("s_nop 1")
        a("v_cndmask_b32 v5, v5, v6, vcc")
        a("s_lshl_b32 s37, s36, 4")
        a("v_add_u32 v4, s37, v4")
        a("v_mul_u32_u24 v4, 288, v4")
        a(f"v_lshl_add_u32 v{VB+p}, v5, 4, v4")
    a("s_lshl_b32 s38, s36, 12")
    a("s_mul_i32 s39, s36, 4608")
    a("s_add_u32 s39, s39, 16384")
    a("s_mov_b32 s40, 0")
    a("s_mov_b32 s43, 0")
    a("s_mov_b32 s44, 0")
    if ROT:
        a("s_lshr_b32 s50, s34, 7")
        a(f"s_mul_i32 s50, s50, {ROT}")
        a("s_lshl_b32 s43, s50, 7")
        a(f"s_mul_i32 s44, s50, {64*1152}")
        a("s_lshl_b32 s51, s47, 7")
    a("s_lshl_b32 s48, s46, 3")
    def issue():
        for qq in range(4):
            a(f"s_add_u32 m0, s38, {qq*1024}")
            if qq == 0:
                a("s_mov_b32 s45, s43")
            else:
                a("s_add_u32 s45, s45, s48")
            a(f"buffer_load_dwordx4 v{VA1 if qq & 1 else VA0}, s[{SA}:{SA+3}], s45 offen lds")
        for p in range(5):
            a(f"s_add_u32 m0, s39, {p*1024}")
            if p == 4:
                a("s_mov_b64 exec, 0xffffffff")
            else:
                a("s_nop 0")
            a(f"buffer_load_dwordx4 v{VB+p}, s[{SB}:{SB+3}], s44 offen lds")
        a("s_mov_b64 exec, -1")
        if not NOADV:
            a("s_add_u32 s43, s43, 128")
            a(f"s_add_u32 s44, s44, {64*288}")
            if ROT:
                a("s_cmp_eq_u32 s43, s51")
                a("s_cselect_b32 s43, 0, s43")
                a("s_cselect_b32 s44, 0, s44")
        a("s_add_u32 s40, s40, 1")
        a(f"s_cmp_eq_u32 s40, {K2_R}")
        a(f"s_cselect_b32 s42, {-(K2_R-1)*K2_S}, {K2_S}")
        a("s_cselect_b32 s40, 0, s40")
        a("s_add_u32 s38, s38, s42")
        a("s_add_u32 s39, s39, s42")
    for st in range(3):
        issue()
    a("s_waitcnt vmcnt(9)")
    a("s_barrier")
    a("s_sub_u32 s41, s47, 3")
    a.label("L_k2_lloop")
    issue()
    a("s_sub_u32 s41, s41, 1")
    a("s_cmp_lg_u32 s41, 0")
    a("s_waitcnt vmcnt(9)")
    a("s_barrier")
    a("s_cbranch_scc1 L_k2_lloop")
    a("s_waitcnt vmcnt(0)")
    a("s_barrier")
    a("s_barrier")
    a("s_barrier")
    a.label("L_k2_epi")
    a("s_load_dwordx2 s[4:5], s[0:1], 0")
    a("s_load_dwordx4 s[8:11], s[0:1], 72")
    a("s_barrier")
    stamp(a, 3)
    a("s_mov_b32 s38, 58255")
    a("s_lshl_b32 s49, s33, 5")
    a("v_mov_b32 v7, 0x3fffffff")
    def publish(bf):
        for it in range(7):
            b = 8 + 12 * (it % 4)
            a(f"v_add_u32 v{b}, {it*512}, v0")
            a(f"v_mul_lo_u32 v{b+1}, v{b}, s38")
            a(f"v_lshrrev_b32 v{b+1}, 21, v{b+1}")
            a(f"v_mul_u32_u24 v{b+2}, 36, v{b+1}")
            a(f"v_sub_u32 v{b+2}, v{b}, v{b+2}")
            a(f"v_add_u32 v{b+3}, 32, v{b+1}")
            a(f"v_cmp_gt_u32 vcc, s49, v{b+1}")
            a("s_nop 1")
            a(f"v_cndmask_b32 v{b+1}, v{b+3}, v{b+1}, vcc")
            a(f"v_mul_u32_u24 v{b+3}, 592, v{b+1}")
            a(f"v_lshl_add_u32 v{b+3}, v{b+2}, 4, v{b+3}")
            a(f"ds_read_b128 {vr(b+4,4)}, v{b+3}")
            a(f"v_add_u32 v{b+3}, 75776, v{b+3}")
            a(f"ds_read_b128 {vr(b+8,4)}, v{b+3}")
            a(f"v_add_u32 v{b+1}, s34, v{b+1}")
            a(f"v_mul_u32_u24 v{b+1}, 576, v{b+1}")
            a(f"v_lshl_add_u32 v{b+1}, v{b+2}, 2, v{b+1}")
            a(f"v_add_u32 v{b+1}, s35, v{b+1}")
            if it == 6:
                a(f"v_cmp_gt_u32 vcc, 3456, v{b}")
                a("s_nop 1")
                a(f"v_cndmask_b32 v{b+1}, v7, v{b+1}, vcc")
            a(f"v_lshlrev_b32 v{b+1}, {1 if bf else 2}, v{b+1}")
            if it in (3, 6):
                n = 4 if it == 3 else 3
                for k in range(n):
                    bb = 8 + 12 * k
                    a(f"s_waitcnt lgkmcnt({2*(n-1-k)})")
                    for e in range(4):
                        a(f"v_add_f32 v{bb+4+e}, v{bb+4+e}, v{bb+8+e}")
                    if bf:
                        a(f"v_cvt_pk_bf16_f32 v{bb+4}, v{bb+4}, v{bb+5}")
                        a(f"v_cvt_pk_bf16_f32 v{bb+5}, v{bb+6}, v{bb+7}")
                        a(f"buffer_store_dwordx2 {vr(bb+4,2)}, v{bb+1}, s[{SO}:{SO+3}], 0 offen sc1")
                    else:
                        a(f"buffer_store_dwordx4 {vr(bb+4,4)}, v{bb+1}, s[{SO}:{SO+3}], 0 offen sc1")
                a("s_nop 1")
    a("s_cmp_ge_u32 s33, 2")
    a("s_cbranch_scc1 L_k2_pubf")
    publish(True)
    a("s_branch L_k2_pubd")
    a.label("L_k2_pubf")
    publish(False)
    a.label("L_k2_pubd")
    a("s_waitcnt vmcnt(0) lgkmcnt(0)")
    a("s_barrier")
    stamp(a, 4)
    srd(a, 52, 4, 5, LY.SZ)
    srd(a, 56, 8, 9, 576 * 2)
    srd(a, 60, 10, 11, LY.SZ)
    srd(a, 64, 12, 13, 64 * 128, LY.FLG)
    srd(a, 68, 12, 13, 4 * LY.PSZ, LY.P0)
    a("s_lshr_b32 s39, s34, 5")
    a("s_lshr_b32 s40, s2, 3")
    a("s_and_b32 s40, s40, 3")
    a("s_add_u32 s39, s39, s40")
    a("s_lshl_b32 s39, s39, 7")
    a("s_cmp_lg_u32 s32, 0")
    a("s_cbranch_scc1 L_k2_nosig")
    a("v_mov_b32 v200, 1")
    a("s_lshl_b32 s40, s33, 2")
    a("s_add_u32 s40, s40, s39")
    a("v_mov_b32 v201, s40")
    a("v_mov_b32 v202, s39")
    a("s_mov_b64 exec, 1")
    a("buffer_store_dword v200, v201, s[64:67], 0 offen sc1")
    a("s_mov_b64 exec, -1")
    a.label("L_k2_nosig")
    FI = 8
    for it in range(3):
        b = FI + 40 * it
        a(f"v_add_u32 v{b}, {it*512}, v0")
        a(f"v_mul_lo_u32 v{b+1}, v{b}, s38")
        a(f"v_lshrrev_b32 v{b+1}, 21, v{b+1}")
        a(f"v_mul_u32_u24 v{b+2}, 36, v{b+1}")
        a(f"v_sub_u32 v{b+2}, v{b}, v{b+2}")
        a(f"v_add_u32 v{b+1}, s49, v{b+1}")
        a(f"v_mul_u32_u24 v{b+3}, 592, v{b+1}")
        a(f"v_lshl_add_u32 v{b+3}, v{b+2}, 4, v{b+3}")
        a(f"v_add_u32 v{b+1}, s34, v{b+1}")
        a(f"v_mul_u32_u24 v{b+1}, 576, v{b+1}")
        a(f"v_lshl_add_u32 v{b+1}, v{b+2}, 2, v{b+1}")
        a(f"v_add_u32 v{b+1}, s35, v{b+1}")
        if it == 2:
            a(f"v_cmp_gt_u32 vcc, 1152, v{b}")
            a("s_nop 1")
            a(f"v_cndmask_b32 v{b+1}, v7, v{b+1}, vcc")
            a(f"v_mov_b32 v{b+4}, 0")
            a(f"v_cndmask_b32 v{b+3}, v{b+4}, v{b+3}, vcc")
        a(f"v_lshlrev_b32 v{b+4}, 1, v{b+1}")
        a(f"v_lshlrev_b32 v{b+5}, 2, v{b+1}")
        a(f"v_lshlrev_b32 v{b+2}, 3, v{b+2}")
        a("s_lshl_b32 s40, s35, 1")
        a(f"buffer_load_dwordx2 {vr(b+6,2)}, v{b+4}, s[52:55], 0 offen")
        a(f"buffer_load_dwordx2 {vr(b+8,2)}, v{b+2}, s[56:59], s40 offen")
        a(f"ds_read_b128 {vr(b+12,4)}, v{b+3}")
        a(f"v_add_u32 v{b+3}, 75776, v{b+3}")
        a(f"ds_read_b128 {vr(b+16,4)}, v{b+3}")
    a("s_cmp_lg_u32 s32, 0")
    a("s_cbranch_scc1 L_k2_wait")
    a("s_mov_b64 exec, 1")
    a.label("L_k2_poll")
    a("buffer_load_dwordx4 v[204:207], v202, s[64:67], 0 offen sc1")
    a("s_waitcnt vmcnt(0)")
    a("v_and_b32 v204, v204, v205")
    a("v_and_b32 v206, v206, v207")
    a("v_and_b32 v204, v204, v206")
    a("s_nop 0")
    a("v_readfirstlane_b32 s40, v204")
    a("s_cmp_eq_u32 s40, 1")
    a("s_cbranch_scc1 L_k2_polldone")
    a("s_sleep 1")
    a("s_branch L_k2_poll")
    a.label("L_k2_polldone")
    a("s_mov_b64 exec, -1")
    a.label("L_k2_wait")
    a("s_barrier")
    stamp(a, 5)
    for it in range(3):
        b = FI + 40 * it
        for p in range(2):
            a(f"s_mov_b32 s39, {p*LY.PSZ}")
            a(f"buffer_load_dwordx2 {vr(b+20+4*p,2)}, v{b+4}, s[68:71], s39 offen sc1")
        for p in range(2, 4):
            a(f"s_mov_b32 s39, {p*LY.PSZ}")
            a(f"buffer_load_dwordx4 {vr(b+20+4*p,4)}, v{b+5}, s[68:71], s39 offen sc1")
    a("s_mov_b32 s14, 0xffff0000")
    a("s_mov_b32 s15, 0xbfb8aa3b")
    a("s_waitcnt lgkmcnt(0)")
    for it in range(3):
        b = FI + 40 * it
        for e in range(4):
            a(f"v_add_f32 v{b+12+e}, v{b+12+e}, v{b+16+e}")
    def rpair(r0, r1, t):
        a(f"v_cvt_pk_bf16_f32 v{t}, v{r0}, v{r1}")
        a(f"v_lshlrev_b32 v{r0}, 16, v{t}")
        a(f"v_and_b32 v{r1}, s14, v{t}")
    for it in range(3):
        b = FI + 40 * it
        a(f"s_waitcnt vmcnt({8-4*it})")
        SRE, SIM, ML, MH = b + 20, b + 24, b + 28, b + 32
        for S in (SRE, SIM):
            a(f"v_and_b32 v{S+3}, s14, v{S+1}")
            a(f"v_lshlrev_b32 v{S+2}, 16, v{S+1}")
            a(f"v_and_b32 v{S+1}, s14, v{S}")
            a(f"v_lshlrev_b32 v{S}, 16, v{S}")
        for p in range(4):
            l = a.newlabel("own")
            a(f"s_cmp_lg_u32 s33, {p}")
            a(f"s_cbranch_scc1 {l}")
            for e in range(4):
                a(f"v_mov_b32 v{b+20+4*p+e}, v{b+12+e}")
            a.label(l)
        X, BB = b + 12, b + 16
        for e in range(2):
            a(f"v_lshlrev_b32 v{X+2*e}, 16, v{b+6+e}")
            a(f"v_and_b32 v{X+2*e+1}, s14, v{b+6+e}")
            a(f"v_lshlrev_b32 v{BB+2*e}, 16, v{b+8+e}")
            a(f"v_and_b32 v{BB+2*e+1}, s14, v{b+8+e}")
        T0, T1 = b + 36, b + 37
        for e in range(0, 4, 2):
            rpair(SRE+e, SRE+e+1, T0)
            rpair(SIM+e, SIM+e+1, T1)
            for k in range(2):
                a(f"v_sub_f32 v{SRE+e+k}, v{SRE+e+k}, v{SIM+e+k}")
                a(f"v_add_f32 v{ML+e+k}, v{ML+e+k}, v{MH+e+k}")
            rpair(SRE+e, SRE+e+1, T0)
            rpair(ML+e, ML+e+1, T1)
            for k in range(2):
                a(f"v_add_f32 v{ML+e+k}, v{ML+e+k}, v{BB+e+k}")
            rpair(ML+e, ML+e+1, T1)
            for k in range(2):
                a(f"v_mul_f32 v{b+38+k}, s15, v{ML+e+k}")
                a(f"v_exp_f32 v{b+38+k}, v{b+38+k}")
            a("s_nop 0")
            for k in range(2):
                a(f"v_add_f32 v{b+38+k}, 1.0, v{b+38+k}")
                a(f"v_rcp_f32 v{b+38+k}, v{b+38+k}")
            a("s_nop 0")
            for k in range(2):
                a(f"v_mul_f32 v{ML+e+k}, v{ML+e+k}, v{b+38+k}")
            rpair(ML+e, ML+e+1, T1)
            for k in range(2):
                a(f"v_mul_f32 v{SRE+e+k}, v{SRE+e+k}, v{ML+e+k}")
            rpair(SRE+e, SRE+e+1, T0)
            for k in range(2):
                a(f"v_add_f32 v{SRE+e+k}, v{SRE+e+k}, v{X+e+k}")
            a(f"v_cvt_pk_bf16_f32 v{b+6+e//2}, v{SRE+e}, v{SRE+e+1}")
        a(f"buffer_store_dwordx2 {vr(b+6,2)}, v{b+4}, s[60:63], 0 offen")
    stamp(a, 6)
    a.label("L_k2_done")
    a("s_endpgm")
    return kernel_desc(name, 256)

def gen_k3(a):
    name = "final_kernel"
    kernel_header(a, name)
    a("s_cmp_ge_u32 s2, 576")
    a("s_cbranch_scc1 L_k3_done")
    a("s_load_dwordx2 s[4:5], s[0:1], 0")
    a("s_load_dwordx4 s[8:11], s[0:1], 72")
    a("s_load_dwordx2 s[12:13], s[0:1], 96")
    a("s_lshl_b32 s3, s2, 8")
    a("v_add_u32 v1, s3, v0")
    a("s_mov_b32 s3, 59652324")
    a("v_mul_hi_u32 v2, v1, s3")
    a("v_mul_u32_u24 v2, 72, v2")
    a("v_sub_u32 v2, v1, v2")
    a("v_lshlrev_b32 v2, 4, v2")
    a("v_lshlrev_b32 v3, 4, v1")
    a("v_lshlrev_b32 v4, 5, v1")
    a("s_waitcnt lgkmcnt(0)")
    srd(a, 16, 4, 5, LY.SZ)
    srd(a, 20, 8, 9, 576 * 2)
    srd(a, 24, 10, 11, LY.SZ)
    srd(a, 28, 12, 13, 4 * LY.PSZ, LY.P0)
    a("buffer_load_dwordx4 v[8:11], v3, s[16:19], 0 offen")
    a("buffer_load_dwordx4 v[12:15], v2, s[20:23], 0 offen")
    for p in range(4):
        a(f"s_mov_b32 s3, {p*LY.PSZ}")
        a(f"buffer_load_dwordx4 {vr(16+8*p,4)}, v4, s[28:31], s3 offen")
        a(f"buffer_load_dwordx4 {vr(20+8*p,4)}, v4, s[28:31], s3 offen offset:16")
    a("s_mov_b32 s14, 0xffff0000")
    a("s_mov_b32 s15, 0xbfb8aa3b")
    a("s_waitcnt vmcnt(0)")
    X, BB = 48, 56
    for e in range(4):
        a(f"v_lshlrev_b32 v{X+2*e}, 16, v{8+e}")
        a(f"v_and_b32 v{X+2*e+1}, s14, v{8+e}")
        a(f"v_lshlrev_b32 v{BB+2*e}, 16, v{12+e}")
        a(f"v_and_b32 v{BB+2*e+1}, s14, v{12+e}")
    def rpair(r0, r1, t):
        a(f"v_cvt_pk_bf16_f32 v{t}, v{r0}, v{r1}")
        a(f"v_lshlrev_b32 v{r0}, 16, v{t}")
        a(f"v_and_b32 v{r1}, s14, v{t}")
    SRE, SIM, ML, MH = 16, 24, 32, 40
    for e in range(0, 8, 2):
        rpair(SRE+e, SRE+e+1, 64)
        rpair(SIM+e, SIM+e+1, 65)
        for k in range(2):
            a(f"v_sub_f32 v{SRE+e+k}, v{SRE+e+k}, v{SIM+e+k}")
            a(f"v_add_f32 v{ML+e+k}, v{ML+e+k}, v{MH+e+k}")
        rpair(SRE+e, SRE+e+1, 64)
        rpair(ML+e, ML+e+1, 65)
        for k in range(2):
            a(f"v_add_f32 v{ML+e+k}, v{ML+e+k}, v{BB+e+k}")
        rpair(ML+e, ML+e+1, 65)
        for k in range(2):
            a(f"v_mul_f32 v{66+k}, s15, v{ML+e+k}")
            a(f"v_exp_f32 v{66+k}, v{66+k}")
        a("s_nop 0")
        for k in range(2):
            a(f"v_add_f32 v{66+k}, 1.0, v{66+k}")
            a(f"v_rcp_f32 v{66+k}, v{66+k}")
        a("s_nop 0")
        for k in range(2):
            a(f"v_mul_f32 v{ML+e+k}, v{ML+e+k}, v{66+k}")
        rpair(ML+e, ML+e+1, 65)
        for k in range(2):
            a(f"v_mul_f32 v{SRE+e+k}, v{SRE+e+k}, v{ML+e+k}")
        rpair(SRE+e, SRE+e+1, 64)
        for k in range(2):
            a(f"v_add_f32 v{SRE+e+k}, v{SRE+e+k}, v{X+e+k}")
        a(f"v_cvt_pk_bf16_f32 v{8+e//2}, v{SRE+e}, v{SRE+e+1}")
    a("buffer_store_dwordx4 v[8:11], v3, s[24:27], 0 offen")
    a.label("L_k3_done")
    a("s_endpgm")
    return kernel_desc(name, 72)

def main():
    a = Asm()
    hdr = open(f"cdna_kernels/{NAME}.s.ref").read().split("; Override launch")[0]
    descs = [gen_ln(a), gen_k1(a), gen_k2(a)]
    out = hdr
    out += "; @launch kernel=ln_kernel grid=(256,1,1) block=(256,1,1) lds=0\n"
    out += f"; @launch kernel=gemm1_kernel grid=(256,1,1) block=(512,1,1) lds={K1_LDS}\n"
    out += f"; @launch kernel=gemm2_kernel grid=(256,1,1) block=(512,1,1) lds={max(K2_S*K2_R, 2*75776)}\n"
    out += '.amdgcn_target "amdgcn-amd-amdhsa--gfx950"\n'
    out += "\n".join(a.lines) + "\n"
    out += "\n".join(descs)
    dst = sys.argv[1] if len(sys.argv) > 1 else f"cdna_kernels/{NAME}.s"
    open(dst, "w").write(out)
    print("wrote", dst, len(out))

main()
```

```python
import sys, re, os
NOADV = int(os.environ.get('NOADV', '0'))
NOCOMP = int(os.environ.get('NOCOMP', '0'))
NOLOAD = int(os.environ.get('NOLOAD', '0'))
NOSTORE = int(os.environ.get('NOSTORE', '0'))
STAMP = int(os.environ.get('STAMP', '0'))
PF2 = int(os.environ.get('PF2', '6'))
ROT = int(os.environ.get('ROT', '0'))
PFH = int(os.environ.get('PFH', '0'))
PRIO = os.environ.get('PRIO', '')
REGST = int(os.environ.get('REGST', '0'))
LPROF = int(os.environ.get('LPROF', '0'))
WRAP = int(os.environ.get('WRAP', '0'))
NOSWZ = int(os.environ.get('NOSWZ', '0'))
EAGER = int(os.environ.get('EAGER', '0'))
import layout as LY

NAME = "recurrent_scan__spectral_fnet__mixer_channel_mlp__prompt"

class Asm:
    def __init__(self):
        self.lines = []
        self.uid = 0
        self.inloop = False
    def __call__(self, s):
        if NOCOMP and (s.startswith("v_mfma") or s.startswith("ds_read_b64_tr") or (s.startswith("ds_read_b128") and self.inloop)):
            return
        if NOLOAD and s.endswith(" lds"):
            return
        if NOSTORE and s.startswith("buffer_store_dwordx4") and "s[24:27]" in s and "v3," not in s:
            return
        m = re.match(r"s_cselect_b32 (s\d+), (-?\d+), (-?\d+)$", s)
        if m and not (-16 <= int(m.group(2)) <= 64) and not (-16 <= int(m.group(3)) <= 64):
            self.lines.append(f"    s_mov_b32 {m.group(1)}, {m.group(3)}")
            self.lines.append(f"    s_cselect_b32 {m.group(1)}, {m.group(2)}, {m.group(1)}")
            return
        self.lines.append("    " + s)
    def label(self, l):
        self.lines.append(l + ":")
    def raw(self, s):
        self.lines.append(s)
    def c(self, s):
        self.lines.append("    ; " + s)
    def newlabel(self, p):
        self.uid += 1
        return f"L_{p}_{self.uid}"

def vr(b, n=1):
    return f"v{b}" if n == 1 else f"v[{b}:{b+n-1}]"
def sr(b, n=1):
    return f"s{b}" if n == 1 else f"s[{b}:{b+n-1}]"

def srd(a, d, base_lo, base_hi, nbytes, off=0):
    if off:
        a(f"s_add_u32 s{d}, s{base_lo}, {off}")
        a(f"s_addc_u32 s{d+1}, s{base_hi}, 0")
    else:
        a(f"s_mov_b32 s{d}, s{base_lo}")
        a(f"s_mov_b32 s{d+1}, s{base_hi}")
    a(f"s_mov_b32 s{d+2}, {nbytes}")
    a(f"s_mov_b32 s{d+3}, 0x00020000")

def stamp_init(a, koff=0):
    if not STAMP: return
    a("s_load_dwordx2 s[80:81], s[0:1], 96")
    a("s_waitcnt lgkmcnt(0)")
    a(f"s_add_u32 s80, s80, {56*1024*1024 + koff}")
    a("s_addc_u32 s81, s81, 0")
    a("s_mov_b32 s82, 65536")
    a("s_mov_b32 s83, 0x00020000")
def stamp(a, slot):
    if not STAMP: return
    a("s_memrealtime s[92:93]")
    a("s_waitcnt lgkmcnt(0)")
    a("s_lshl_b32 s93, s32, 5")
    a("s_lshl_b32 s94, s2, 8")
    a("s_add_u32 s93, s93, s94")
    a(f"s_add_u32 s93, s93, {slot*4}")
    a("v_mov_b32 v254, s92")
    a("v_mov_b32 v255, s93")
    a("buffer_store_dword v254, v255, s[80:83], 0 offen")

def kernel_header(a, name):
    a.raw(".text")
    a.raw(f".globl {name}")
    a.raw(".p2align 8")
    a.raw(f".type {name},@function")
    a.label(name)

def kernel_desc(name, vgpr, sgpr=96):
    acc = (vgpr + 3) // 4 * 4
    return f""".section .rodata,"a"
.p2align 6
.amdhsa_kernel {name}
  .amdhsa_next_free_vgpr {vgpr}
  .amdhsa_next_free_sgpr {sgpr}
  .amdhsa_accum_offset {acc}
  .amdhsa_group_segment_fixed_size 0
  .amdhsa_kernarg_size 104
  .amdhsa_user_sgpr_count 2
  .amdhsa_user_sgpr_kernarg_segment_ptr 1
  .amdhsa_system_sgpr_workgroup_id_x 1
.end_amdhsa_kernel
"""

class LdsQ:
    def __init__(self, a):
        self.a = a
        self.q = []
        self.done = 0
    def issue(self, tag, text):
        self.a(text)
        self.q.append(tag)
    def need(self, tags):
        idx = -1
        for t in tags:
            for p in range(len(self.q) - 1, -1, -1):
                if self.q[p] == t:
                    idx = max(idx, p)
                    break
            else:
                raise Exception(f"tag {t} never issued")
        if idx < self.done:
            return
        n = len(self.q) - 1 - idx
        n = min(n, 15)
        self.a(f"s_waitcnt lgkmcnt({n})")
        self.done = len(self.q) - n

def gen_ln(a):
    name = "ln_kernel"
    kernel_header(a, name)
    a("s_cmp_ge_u32 s2, 256")
    a("s_cbranch_scc1 L_ln_done")
    a("s_load_dwordx2 s[4:5], s[0:1], 0")
    a("s_load_dwordx2 s[6:7], s[0:1], 96")
    a("v_lshrrev_b32 v1, 5, v0")
    a("s_lshl_b32 s3, s2, 3")
    a("v_add_u32 v1, s3, v1")
    a("v_and_b32 v2, 31, v0")
    a("v_mul_u32_u24 v1, 1152, v1")
    a("v_lshl_add_u32 v1, v2, 2, v1")
    a("s_waitcnt lgkmcnt(0)")
    srd(a, 8, 4, 5, LY.SZ)
    srd(a, 12, 6, 7, 2 * LY.SZ)
    srd(a, 20, 6, 7, 64 * 128, LY.FLG)
    a("s_lshl_b32 s3, s2, 8")
    a("v_add_u32 v3, s3, v0")
    a("v_mov_b32 v4, 0")
    a("buffer_store_byte v4, v3, s[20:23], 0 offen")
    P = 10
    F = 20
    for j in range(9):
        a(f"buffer_load_dword v{P+j}, v1, s[8:11], 0 offen offset:{j*128}")
    a("s_mov_b32 s16, 0xffff0000")
    a("s_mov_b32 s17, 0x3ae38e39")
    a("s_mov_b32 s18, 0x3727c5ac")
    a("s_waitcnt vmcnt(0)")
    for j in range(9):
        a(f"v_lshlrev_b32 v{F+2*j}, 16, v{P+j}")
        a(f"v_and_b32 v{F+2*j+1}, s16, v{P+j}")
    S, T, M, D, R, Q, E = 40, 41, 42, 43, 44, 45, 46
    G = 50
    def reduce32(v):
        for sh in (8, 4, 2, 1):
            a("s_nop 1")
            a(f"v_add_f32_dpp v{v}, v{v}, v{v} row_ror:{sh} row_mask:0xf bank_mask:0xf")
        a(f"ds_swizzle_b32 v{T}, v{v} offset:0x401F")
        a("s_waitcnt lgkmcnt(0)")
        a(f"v_add_f32 v{v}, v{v}, v{T}")
    def rbf(v):
        a(f"v_cvt_pk_bf16_f32 v{v}, v{v}, v{v}")
        a(f"v_lshlrev_b32 v{v}, 16, v{v}")
    def ln(outoff):
        a(f"v_add_f32 v{S}, v{F}, v{F+1}")
        for i in range(2, 18):
            a(f"v_add_f32 v{S}, v{S}, v{F+i}")
        reduce32(S)
        a(f"v_mul_f32 v{M}, s17, v{S}")
        for i in range(18):
            a(f"v_sub_f32 v{G+i}, v{F+i}, v{M}")
        a(f"v_mul_f32 v{S}, v{G}, v{G}")
        for i in range(1, 18):
            a(f"v_fmac_f32 v{S}, v{G+i}, v{G+i}")
        reduce32(S)
        a(f"v_mul_f32 v{D}, s17, v{S}")
        rbf(D)
        a(f"v_add_f32 v{D}, s18, v{D}")
        rbf(D)
        a(f"v_sqrt_f32 v{D}, v{D}")
        a("s_nop 0")
        rbf(D)
        rbf(M)
        a(f"v_rcp_f32 v{R}, v{D}")
        for i in range(18):
            a(f"v_sub_f32 v{G+i}, v{F+i}, v{M}")
        for j in range(9):
            a(f"v_cvt_pk_bf16_f32 v{P+j}, v{G+2*j}, v{G+2*j+1}")
            a(f"v_lshlrev_b32 v{G+2*j}, 16, v{P+j}")
            a(f"v_and_b32 v{G+2*j+1}, s16, v{P+j}")
        for i in range(18):
            a(f"v_mul_f32 v{Q}, v{G+i}, v{R}")
            a(f"v_fma_f32 v{E}, -v{Q}, v{D}, v{G+i}")
            a(f"v_fma_f32 v{F+i}, v{E}, v{R}, v{Q}")
        for j in range(9):
            a(f"v_cvt_pk_bf16_f32 v{P+j}, v{F+2*j}, v{F+2*j+1}")
            a(f"v_lshlrev_b32 v{F+2*j}, 16, v{P+j}")
            a(f"v_and_b32 v{F+2*j+1}, s16, v{P+j}")
        a(f"s_mov_b32 s19, {outoff}")
        for j in range(9):
            a(f"buffer_store_dword v{P+j}, v1, s[12:15], s19 offen offset:{j*128}")
    ln(LY.XN)
    a("s_nop 1")
    ln(LY.Y)
    a.label("L_ln_done")
    a("s_endpgm")
    return kernel_desc(name, 72)

K1_AS = 32768
K1_BS = 12288
K1_B0 = 3 * K1_AS
K1_LDS = K1_B0 + 5 * K1_BS
K1_N = 18
def gen_k1(a):
    name = "gemm1_kernel"
    kernel_header(a, name)
    a("s_cmp_ge_u32 s2, 256")
    a("s_cbranch_scc1 L_k1_done")
    a("s_cmp_ge_u32 s2, 240")
    a("s_cbranch_scc1 L_k1_copy")
    stamp_init(a)
    a("s_load_dwordx4 s[4:7], s[0:1], 24")
    a("s_load_dwordx4 s[8:11], s[0:1], 48")
    a("s_load_dwordx2 s[12:13], s[0:1], 96")
    a("v_lshrrev_b32 v1, 6, v0")
    a("v_and_b32 v2, 63, v0")
    a("s_and_b32 s33, s2, 7")
    a("s_lshr_b32 s34, s2, 3")
    a("s_mul_i32 s33, s33, 30")
    a("s_add_u32 s34, s34, s33")
    a("s_and_b32 s33, s34, 7")
    a("s_lshr_b32 s34, s34, 3")
    a("v_readfirstlane_b32 s32, v1")
    a("s_lshl_b32 s33, s33, 8")
    a("s_waitcnt lgkmcnt(0)")
    a("s_cmp_ge_u32 s34, 24")
    a("s_cbranch_scc1 L_k1_nt")
    gen_k1_path(a, False)
    a.label("L_k1_nt")
    gen_k1_path(a, True)
    a.label("L_k1_copy")
    a("s_load_dwordx2 s[8:9], s[0:1], 64")
    a("s_load_dwordx2 s[12:13], s[0:1], 96")
    a("s_sub_u32 s33, s2, 240")
    a(f"s_mul_i32 s33, s33, {288*72}")
    a("v_add_u32 v1, s33, v0")
    a("s_waitcnt lgkmcnt(0)")
    srd(a, 16, 8, 9, 4608 * 1152)
    srd(a, 20, 12, 13, 4608 * 1152, LY.W2R)
    a("s_mov_b32 s34, 59652324")
    a("s_mov_b32 s41, 5")
    a.label("L_k1_copy_loop")
    for u in range(8):
        b = 8 + 8 * u
        a(f"v_add_u32 v{b}, {u*512}, v1")
        a(f"v_lshlrev_b32 v{b+1}, 4, v{b}")
        a(f"buffer_load_dwordx4 {vr(b+4,4)}, v{b+1}, s[16:19], 0 offen")
        a(f"v_mul_hi_u32 v{b+1}, v{b}, s34")
        a(f"v_mul_u32_u24 v{b+2}, 72, v{b+1}")
        a(f"v_sub_u32 v{b+2}, v{b}, v{b+2}")
        a(f"v_mul_u32_u24 v{b+3}, 3641, v{b+2}")
        a(f"v_lshrrev_b32 v{b+3}, 16, v{b+3}")
        a(f"v_mul_u32_u24 v{b}, 18, v{b+3}")
        a(f"v_sub_u32 v{b+2}, v{b+2}, v{b}")
        a(f"v_mul_u32_u24 v{b+1}, 288, v{b+1}")
        a(f"v_lshl_add_u32 v{b+1}, v{b+2}, 4, v{b+1}")
        a(f"s_mov_b32 s35, {4608*288}")
        a(f"v_mul_lo_u32 v{b+3}, v{b+3}, s35")
        a(f"v_add_u32 v{b+1}, v{b+1}, v{b+3}")
    for u in range(8):
        b = 8 + 8 * u
        a(f"s_waitcnt vmcnt({7-u+u})") if False else None
    a("s_waitcnt vmcnt(0)")
    for u in range(8):
        b = 8 + 8 * u
        a(f"buffer_store_dwordx4 {vr(b+4,4)}, v{b+1}, s[20:23], 0 offen")
    a("v_add_u32 v1, 4096, v1")
    a("s_sub_u32 s41, s41, 1")
    a("s_cmp_lg_u32 s41, 0")
    a("s_cbranch_scc1 L_k1_copy_loop")
    a("v_cmp_gt_u32 vcc, 256, v0")
    a("s_and_saveexec_b64 s[36:37], vcc")
    a("s_cbranch_execz L_k1_done")
    b = 8
    a(f"v_lshlrev_b32 v{b+1}, 4, v1")
    a(f"buffer_load_dwordx4 {vr(b+4,4)}, v{b+1}, s[16:19], 0 offen")
    a(f"v_mul_hi_u32 v{b+1}, v1, s34")
    a(f"v_mul_u32_u24 v{b+2}, 72, v{b+1}")
    a(f"v_sub_u32 v{b+2}, v1, v{b+2}")
    a(f"v_mul_u32_u24 v{b+3}, 3641, v{b+2}")
    a(f"v_lshrrev_b32 v{b+3}, 16, v{b+3}")
    a(f"v_mul_u32_u24 v{b}, 18, v{b+3}")
    a(f"v_sub_u32 v{b+2}, v{b+2}, v{b}")
    a(f"v_mul_u32_u24 v{b+1}, 288, v{b+1}")
    a(f"v_lshl_add_u32 v{b+1}, v{b+2}, 4, v{b+1}")
    a(f"s_mov_b32 s35, {4608*288}")
    a(f"v_mul_lo_u32 v{b+3}, v{b+3}, s35")
    a(f"v_add_u32 v{b+1}, v{b+1}, v{b+3}")
    a("s_waitcnt vmcnt(0)")
    a(f"buffer_store_dwordx4 {vr(b+4,4)}, v{b+1}, s[20:23], 0 offen")
    a.label("L_k1_done")
    a("s_endpgm")
    return kernel_desc(name, 256)

def gen_k1_path(a, nt):
    tg = "nt" if nt else "nn"
    SA, SB, SO, SBI = 16, 20, 24, 28
    if nt:
        srd(a, SA, 12, 13, LY.SZ, LY.XN)
        a("s_sub_u32 s34, s34, 24")
        a("s_cmp_ge_u32 s34, 3")
        a("s_cselect_b32 s20, s6, s4")
        a("s_cselect_b32 s21, s7, s5")
        a(f"s_mov_b32 s22, {576*576*2}")
        a("s_mov_b32 s23, 0x00020000")
        a(f"s_cselect_b32 s35, {LY.B}, {LY.A}")
        a("s_add_u32 s24, s12, s35")
        a("s_addc_u32 s25, s13, 0")
        a(f"s_mov_b32 s26, {LY.SZ}")
        a("s_mov_b32 s27, 0x00020000")
        a("s_cmp_ge_u32 s34, 3")
        a("s_cselect_b32 s35, 3, 0")
        a("s_sub_u32 s34, s34, s35")
        a("s_mul_i32 s34, s34, 192")
        ldo = 288
    else:
        srd(a, SA, 12, 13, LY.SZ, LY.Y)
        srd(a, SB, 8, 9, 576 * 4608 * 2)
        srd(a, SO, 12, 13, LY.HSZ, LY.H)
        srd(a, SBI, 10, 11, 4608 * 2)
        a("s_mul_i32 s34, s34, 192")
        ldo = 9216
    stamp(a, 0)
    a("s_cmp_ge_u32 s32, 4")
    a(f"s_cbranch_scc1 L_k1_{tg}_loader")
    ACC = 64
    FA = 8
    FB = 24
    AA = [[48, 49], [50, 51]]
    AB0, AB1 = 52, 53
    a("s_lshr_b32 s36, s32, 1")
    a("s_and_b32 s37, s32, 1")
    a("v_and_b32 v3, 31, v2")
    a("v_lshrrev_b32 v4, 5, v2")
    a("v_bfe_u32 v5, v2, 1, 3")
    a("v_xor_b32 v6, v4, v5")
    a("s_lshl_b32 s38, s36, 7")
    a("v_add_u32 v7, s38, v3")
    a("v_lshlrev_b32 v7, 7, v7")
    a(f"v_lshl_add_u32 v{AA[0][0]}, v6, 4, v7")
    a(f"v_xor_b32 v{AA[0][1]}, 32, v{AA[0][0]}")
    a(f"v_xor_b32 v{AA[1][0]}, 64, v{AA[0][0]}")
    a(f"v_xor_b32 v{AA[1][1]}, 96, v{AA[0][0]}")
    if nt:
        a("v_bfe_u32 v5, v2, 2, 2")
        a("v_xor_b32 v6, v4, v5")
        a("s_mul_i32 s38, s37, 96")
        a("v_add_u32 v7, s38, v3")
        a("v_lshlrev_b32 v7, 6, v7")
        a(f"v_lshl_add_u32 v{AB0}, v6, 4, v7")
        a(f"v_add_u32 v{AB0}, {K1_B0}, v{AB0}")
        a(f"v_xor_b32 v{AB1}, 32, v{AB0}")
    else:
        a("v_bfe_u32 v3, v2, 2, 2")
        a("v_lshl_add_u32 v3, v4, 3, v3")
        a("v_mul_u32_u24 v3, 384, v3")
        a("v_bfe_u32 v5, v2, 4, 1")
        a("v_lshl_add_u32 v3, v5, 5, v3")
        a("v_and_b32 v5, 3, v2")
        a("v_lshl_add_u32 v3, v5, 3, v3")
        a("s_mul_i32 s38, s37, 192")
        a(f"s_add_u32 s38, s38, {K1_B0}")
        a("v_add_u32 v3, s38, v3")
        a("v_bfe_u32 v5, v2, 3, 1")
        a("v_lshlrev_b32 v5, 6, v5")
        a(f"v_add_u32 v{AB0}, v3, v5")
        a(f"v_sub_u32 v{AB1}, v3, v5")
        a("s_cmp_eq_u32 s37, 1")
        a(f"s_cbranch_scc0 L_k1_noswap")
        a(f"v_mov_b32 v3, v{AB0}")
        a(f"v_mov_b32 v{AB0}, v{AB1}")
        a(f"v_mov_b32 v{AB1}, v3")
        a.label("L_k1_noswap")
    if nt:
        for r in range(192):
            a(f"v_mov_b32 v{ACC+r}, 0")
    else:
        a("s_mul_i32 s38, s37, 96")
        a("s_add_u32 s38, s38, s34")
        a("s_lshl_b32 s38, s38, 1")
        a("v_lshlrev_b32 v3, 3, v4")
        for j in range(3):
            for rq in range(4):
                a(f"buffer_load_dwordx2 {vr(8+2*(4*j+rq),2)}, v3, s[{SBI}:{SBI+3}], s38 offen offset:{j*64+rq*16}")
        a("s_mov_b32 s38, 0xffff0000")
        a("s_waitcnt vmcnt(0)")
        for j in range(3):
            for rq in range(4):
                src = 8 + 2 * (4 * j + rq)
                d = ACC + 16 * j + 4 * rq
                a(f"v_lshlrev_b32 v{d}, 16, v{src}")
                a(f"v_and_b32 v{d+1}, s38, v{src}")
                a(f"v_lshlrev_b32 v{d+2}, 16, v{src+1}")
                a(f"v_and_b32 v{d+3}, s38, v{src+1}")
        for i in range(1, 4):
            for r in range(48):
                a(f"v_mov_b32 v{ACC+48*i+r}, v{ACC+r}")
    a("s_mov_b32 s40, 0")
    a("s_mov_b32 s43, 0")
    a(f"s_mov_b32 s41, {K1_N//2}")
    q = LdsQ(a)
    def rd_a(i, h, kk, step):
        q.issue(("A", i, step), f"ds_read_b128 {vr(FA+4*i,4)}, v{AA[h][kk]} offset:{i*4096}")
    def rd_b(j, kk, setb, step, hh):
        base = FB + 12 * setb + 4 * j
        if nt:
            if hh == 0:
                q.issue(("B", j, step), f"ds_read_b128 {vr(base,4)}, v{AB1 if kk else AB0} offset:{j*2048}")
        else:
            areg = AB1 if (j & 1) else AB0
            q.issue(("B", j, step), f"ds_read_b64_tr_b16 {vr(base+2*hh,2)}, v{areg} offset:{kk*6144+hh*1536+j*64}")
    a("s_barrier")
    stamp(a, 1)
    for j in range(3):
        rd_b(j, 0, 0, 0, 0); rd_b(j, 0, 0, 0, 1)
        rd_a(j, 0, 0, 0)
    def step(cur_set, ch, ckk, nh, nkk, stepid, post0=None):
        for i in range(4):
            q.need([("A", i, stepid)] + ([("B", j, stepid) for j in range(3)] if i == 0 else []))
            if i == 0:
                fill = [lambda: rd_a(3, ch, ckk, stepid)]
            else:
                fill = [lambda: rd_a(i - 1, nh, nkk, stepid + 1)]
            if i < 3:
                fill += [lambda: rd_b(i, nkk, 1 - cur_set, stepid + 1, 0), lambda: rd_b(i, nkk, 1 - cur_set, stepid + 1, 1)]
            for j in range(3):
                acc = ACC + 16 * (3 * i + j)
                a(f"v_mfma_f32_32x32x16_bf16 {vr(acc,16)}, {vr(FB+12*cur_set+4*j,4)}, {vr(FA+4*i,4)}, {vr(acc,16)}")
                if j < len(fill):
                    fill[j]()
                if i == 0 and j == 0 and post0:
                    post0()
    def adv_b():
        a("s_add_u32 s40, s40, 1")
        a("s_cmp_eq_u32 s40, 5")
        a(f"s_cselect_b32 s42, {-4*K1_BS}, {K1_BS}")
        a("s_cselect_b32 s40, 0, s40")
        for r in (AB0, AB1):
            a(f"v_add_u32 v{r}, s42, v{r}")
    def adv_a():
        a("s_add_u32 s43, s43, 1")
        a("s_cmp_eq_u32 s43, 3")
        a(f"s_cselect_b32 s45, {-2*K1_AS}, {K1_AS}")
        a("s_cselect_b32 s43, 0, s43")
        for r in (AA[0][0], AA[0][1], AA[1][0]):
            a(f"v_add_u32 v{r}, s45, v{r}")
    a.label(f"L_k1_{tg}_cloop")
    a.inloop = True
    q.done = 0
    step(0, 0, 0, 0, 1, 0)
    adv_b()
    step(1, 0, 1, 1, 0, 1)
    a("s_barrier")
    step(0, 1, 0, 1, 1, 2)
    adv_b()
    adv_a()
    step(1, 1, 1, 0, 0, 3, post0=lambda: a(f"v_add_u32 v{AA[1][1]}, s45, v{AA[1][1]}"))
    a("s_sub_u32 s41, s41, 1")
    a("s_cmp_lg_u32 s41, 0")
    a("s_barrier")
    a(f"s_cbranch_scc1 L_k1_{tg}_cloop")
    a.inloop = False
    stamp(a, 2)
    a("s_waitcnt lgkmcnt(0)")
    a("s_nop 15")
    a("v_and_b32 v3, 31, v2")
    a("v_lshrrev_b32 v4, 5, v2")
    a("s_lshl_b32 s38, s36, 7")
    a("v_add_u32 v3, s38, v3")
    a("v_mul_u32_u24 v3, 400, v3")
    a("v_lshl_add_u32 v3, v4, 3, v3")
    a("s_mul_i32 s38, s37, 192")
    a("v_add_u32 v3, s38, v3")
    tmp = 8
    cnt = 0
    for i in range(4):
        for j in range(3):
            acc = ACC + 16 * (3 * i + j)
            for rq in range(4):
                t = tmp + 2 * (cnt % 16); cnt += 1
                a(f"v_cvt_pk_bf16_f32 v{t}, v{acc+4*rq}, v{acc+4*rq+1}")
                a(f"v_cvt_pk_bf16_f32 v{t+1}, v{acc+4*rq+2}, v{acc+4*rq+3}")
                a(f"ds_write_b64 v3, {vr(t,2)} offset:{i*12800+j*64+rq*16}")
    a("s_waitcnt lgkmcnt(0)")
    a(f"s_branch L_k1_{tg}_epi")
    a.label(f"L_k1_{tg}_loader")
    if 'L' in PRIO: a("s_setprio 3")
    a("s_sub_u32 s36, s32, 4")
    VA0, VA1 = 8, 9
    VB = 10
    a("v_lshrrev_b32 v3, 3, v2")
    a("v_and_b32 v4, 7, v2")
    a("v_lshrrev_b32 v5, 4, v2")
    a("v_xor_b32 v4, v4, v5")
    a("s_lshl_b32 s37, s36, 6")
    a("s_add_u32 s37, s37, s33")
    a("v_add_u32 v5, s37, v3")
    a("v_mul_u32_u24 v5, 1152, v5")
    a(f"v_lshl_add_u32 v{VA0}, v4, 4, v5")
    a("v_xor_b32 v4, 4, v4")
    a(f"v_lshl_add_u32 v{VA1}, v4, 4, v5")
    if nt:
        a("v_lshrrev_b32 v3, 2, v2")
        a("v_and_b32 v4, 3, v2")
        a("v_bfe_u32 v5, v2, 4, 2")
        a("v_xor_b32 v4, v4, v5")
        a("s_mul_i32 s37, s36, 48")
        a("s_add_u32 s37, s37, s34")
        a("v_add_u32 v5, s37, v3")
        a("v_mul_u32_u24 v5, 1152, v5")
        a(f"v_lshl_add_u32 v{VB}, v4, 4, v5")
    else:
        for p in range(3):
            a(f"v_add_u32 v3, {64*p}, v2")
            a("v_mul_u32_u24 v4, 2731, v3")
            a("v_lshrrev_b32 v4, 16, v4")
            a("v_mul_u32_u24 v5, 24, v4")
            a("v_sub_u32 v5, v3, v5")
            a("v_bfe_u32 v6, v4, 1, 1")
            a("v_lshlrev_b32 v6, 2, v6")
            a("v_xor_b32 v5, v5, v6")
            a("s_lshl_b32 s37, s36, 3")
            a("v_add_u32 v4, s37, v4")
            a("s_mov_b32 s37, 9216")
            a("v_mul_lo_u32 v4, v4, s37")
            a("v_lshl_add_u32 v4, v5, 4, v4")
            a("s_lshl_b32 s37, s34, 1")
            a(f"v_add_u32 v{VB+p}, s37, v4")
    a("s_lshl_b32 s38, s36, 13")
    a("s_mul_i32 s39, s36, 3072")
    a(f"s_add_u32 s39, s39, {K1_B0}")
    a("s_mov_b32 s40, 0")
    a("s_mov_b32 s46, 0")
    a("s_mov_b32 s43, 0")
    a("s_mov_b32 s44, 0")
    def issue_a():
        for qq in range(8):
            a(f"s_add_u32 m0, s38, {qq*1024}")
            a(f"s_add_u32 s45, s43, {qq*9216}")
            a(f"buffer_load_dwordx4 v{VA1 if qq & 1 else VA0}, s[{SA}:{SA+3}], s45 offen lds")
        if not NOADV:
            a("s_add_u32 s43, s43, 128")
        a("s_add_u32 s46, s46, 1")
        a("s_cmp_eq_u32 s46, 3")
        a(f"s_cselect_b32 s42, {-2*K1_AS}, {K1_AS}")
        a("s_cselect_b32 s46, 0, s46")
        a("s_add_u32 s38, s38, s42")
    def issue_b():
        for p in range(3):
            a(f"s_add_u32 m0, s39, {p*1024}")
            if nt:
                a(f"s_add_u32 s45, s44, {p*18432}")
                a(f"buffer_load_dwordx4 v{VB}, s[{SB}:{SB+3}], s45 offen lds")
            else:
                a("s_nop 0")
                a(f"buffer_load_dwordx4 v{VB+p}, s[{SB}:{SB+3}], s44 offen lds")
        if not NOADV:
            a(f"s_add_u32 s44, s44, {64 if nt else 32*9216}")
        a("s_add_u32 s40, s40, 1")
        a("s_cmp_eq_u32 s40, 5")
        a(f"s_cselect_b32 s42, {-4*K1_BS}, {K1_BS}")
        a("s_cselect_b32 s40, 0, s40")
        a("s_add_u32 s39, s39, s42")
    issue_a(); issue_b(); issue_b(); issue_a(); issue_b(); issue_b()
    a("s_waitcnt vmcnt(14)")
    a("s_barrier")
    stamp(a, 1)
    a("s_mov_b32 s41, 7")
    a.label(f"L_k1_{tg}_lloop")
    issue_b(); issue_a()
    a("s_waitcnt vmcnt(14)")
    a("s_barrier")
    issue_b()
    a("s_sub_u32 s41, s41, 1")
    a("s_cmp_lg_u32 s41, 0")
    a("s_waitcnt vmcnt(14)")
    a("s_barrier")
    a(f"s_cbranch_scc1 L_k1_{tg}_lloop")
    a("s_waitcnt vmcnt(3)")
    a("s_barrier")
    a("s_waitcnt vmcnt(0)")
    a("s_barrier")
    a("s_barrier")
    a("s_barrier")
    a.label(f"L_k1_{tg}_epi")
    LA = 8
    GO = 11
    BI = 16
    D = 40
    for ph in range(3):
        a(f"v_add_u32 v3, {512*ph}, v0")
        a("v_mul_u32_u24 v4, 2731, v3")
        a("v_lshrrev_b32 v4, 16, v4")
        a("v_mul_u32_u24 v5, 24, v4")
        a("v_sub_u32 v5, v3, v5")
        a("v_mul_u32_u24 v6, 400, v4")
        a(f"v_lshl_add_u32 v{LA+ph}, v5, 4, v6")
        a("v_add_u32 v4, s33, v4")
        if nt:
            a("v_lshl_add_u32 v5, v5, 3, s34")
            a("v_mul_u32_u24 v6, 7282, v5")
            a("v_lshrrev_b32 v6, 20, v6")
            a("v_mul_u32_u24 v7, 144, v6")
            a("v_sub_u32 v5, v5, v7")
            a("v_mul_u32_u24 v4, 288, v4")
            a("v_lshl_add_u32 v4, v5, 1, v4")
            a(f"s_mov_b32 s37, {2048*288}")
            a("v_mul_lo_u32 v6, v6, s37")
            a(f"v_add_u32 v{GO+ph}, v4, v6")
        else:
            a(f"s_mov_b32 s37, {ldo}")
            a("v_mul_lo_u32 v4, v4, s37")
            a("v_lshl_add_u32 v4, v5, 4, v4")
            a("s_lshl_b32 s37, s34, 1")
            a(f"v_add_u32 v{GO+ph}, s37, v4")
    a("s_mov_b32 s46, 0xffff0000")
    if not nt:
        a("v_mov_b32 v14, 0xc0135761")
        a("s_mov_b32 s48, 0xbdd2d3e7")
    a("s_barrier")
    stamp(a, 3)
    a("s_mov_b32 s37, 0")
    a("s_mov_b32 s41, 4")
    a.label(f"L_k1_{tg}_eloop")
    for ph in range(3):
        DD = D + 24 * ph
        a(f"ds_read_b128 {vr(DD,4)}, v{LA+ph}")
        a(f"v_add_u32 v{LA+ph}, 25600, v{LA+ph}")
    for ph in range(3):
        DD = D + 24 * ph
        a(f"s_waitcnt lgkmcnt({2-ph})")
        if not nt:
            X = DD + 4; T = DD + 12
            for e in range(4):
                a(f"v_lshlrev_b32 v{X+2*e}, 16, v{DD+e}")
                a(f"v_and_b32 v{X+2*e+1}, s46, v{DD+e}")
            for e in range(8):
                a(f"v_mul_f32 v{T+e}, v{X+e}, v{X+e}")
            for e in range(8):
                a(f"v_fma_f32 v{T+e}, v{T+e}, s48, v14")
            for e in range(8):
                a(f"v_mul_f32 v{T+e}, v{X+e}, v{T+e}")
            for e in range(8):
                a(f"v_exp_f32 v{T+e}, v{T+e}")
            for e in range(8):
                a(f"v_add_f32 v{T+e}, 1.0, v{T+e}")
            for e in range(8):
                a(f"v_rcp_f32 v{T+e}, v{T+e}")
            for e in range(8):
                a(f"v_mul_f32 v{X+e}, v{X+e}, v{T+e}")
            for e in range(4):
                a(f"v_cvt_pk_bf16_f32 v{DD+e}, v{X+2*e}, v{X+2*e+1}")
        a(f"buffer_store_dwordx4 {vr(DD,4)}, v{GO+ph}, s[{SO}:{SO+3}], s37 offen")
    a(f"s_add_u32 s37, s37, {64*ldo}")
    a("s_sub_u32 s41, s41, 1")
    a("s_cmp_lg_u32 s41, 0")
    a(f"s_cbranch_scc1 L_k1_{tg}_eloop")
    stamp(a, 4)
    stamp(a, 5)
    a("s_endpgm")

K2_S = 34816
K2_R = 4
def gen_k2(a):
    name = "gemm2_kernel"
    kernel_header(a, name)
    SA, SB, SO = 16, 20, 24
    a("s_cmp_ge_u32 s2, 256")
    a("s_cbranch_scc1 L_k2_done")
    stamp_init(a, 65536)
    a("s_load_dwordx4 s[4:7], s[0:1], 8")
    a("s_load_dwordx2 s[8:9], s[0:1], 64")
    a("s_load_dwordx2 s[12:13], s[0:1], 96")
    a("v_lshrrev_b32 v1, 6, v0")
    a("v_and_b32 v2, 63, v0")
    a("s_and_b32 s33, s2, 3")
    a("s_bfe_u32 s34, s2, 0x10002")
    a("s_lshr_b32 s35, s2, 3")
    a("v_readfirstlane_b32 s32, v1")
    a("s_lshr_b32 s36, s35, 2")
    a("s_lshl_b32 s34, s34, 3")
    a("s_add_u32 s34, s34, s36")
    a("s_lshl_b32 s34, s34, 7")
    a("s_and_b32 s35, s35, 3")
    a("s_mul_i32 s35, s35, 144")
    a("s_waitcnt lgkmcnt(0)")
    a("s_cmp_ge_u32 s33, 2")
    a("s_cbranch_scc1 L_k2_mlp")
    a("s_cmp_eq_u32 s33, 1")
    a("s_cselect_b32 s16, s6, s4")
    a("s_cselect_b32 s17, s7, s5")
    a(f"s_mov_b32 s18, {2048*2048*2}")
    a(f"s_cselect_b32 s36, {LY.B}, {LY.A}")
    a(f"s_mul_i32 s37, s35, {2048*2}")
    a("s_add_u32 s36, s36, s37")
    a("s_add_u32 s20, s12, s36")
    a("s_addc_u32 s21, s13, 0")
    a(f"s_mov_b32 s22, {2048*288}")
    a("s_mov_b32 s46, 4096")
    a("s_mov_b32 s47, 32")
    a("s_branch L_k2_go")
    a.label("L_k2_mlp")
    a("s_cmp_eq_u32 s33, 3")
    a(f"s_cselect_b32 s36, {LY.H + 2304*2}, {LY.H}")
    a(f"s_cselect_b32 s18, {LY.HSZ - 2304*2}, {LY.HSZ}")
    a(f"s_cselect_b32 s37, {2304*288 + LY.W2R}, {LY.W2R}")
    a(f"s_mov_b32 s22, {2304*288}")
    a("s_add_u32 s16, s12, s36")
    a("s_addc_u32 s17, s13, 0")
    a(f"s_mul_i32 s36, s35, {4608*2}")
    a("s_add_u32 s37, s37, s36")
    a("s_add_u32 s20, s12, s37")
    a("s_addc_u32 s21, s13, 0")
    a("s_mov_b32 s46, 9216")
    a("s_mov_b32 s47, 36")
    a.label("L_k2_go")
    a("s_mov_b32 s19, 0x00020000")
    a("s_mov_b32 s23, 0x00020000")
    a(f"s_mul_i32 s36, s33, {LY.PSZ}")
    a(f"s_add_u32 s36, s36, {LY.P0}")
    a("s_add_u32 s24, s12, s36")
    a("s_addc_u32 s25, s13, 0")
    a(f"s_mov_b32 s26, {LY.PSZ}")
    a("s_mov_b32 s27, 0x00020000")
    stamp(a, 0)
    a("s_cmp_ge_u32 s32, 4")
    a("s_cbranch_scc1 L_k2_loader")
    ACC = 112
    FA = 8
    FB = 40
    AA, AP, AQ, AR = 76, 77, 78, 79
    a("s_lshr_b32 s36, s32, 1")
    a("s_and_b32 s37, s32, 1")
    a("v_and_b32 v3, 15, v2")
    a("v_lshrrev_b32 v4, 4, v2")
    a("s_lshl_b32 s38, s37, 2")
    a("v_add_u32 v5, s38, v4")
    a("v_lshrrev_b32 v6, 1, v3")
    a("v_xor_b32 v5, v5, v6")
    a("s_lshl_b32 s38, s36, 6")
    a("v_add_u32 v6, s38, v3")
    a("v_lshlrev_b32 v6, 7, v6")
    a(f"v_lshl_add_u32 v{AA}, v5, 4, v6")
    a("v_lshrrev_b32 v5, 2, v3")
    a("v_lshl_add_u32 v5, v4, 3, v5")
    a("s_lshl_b32 s38, s37, 5")
    a("v_add_u32 v5, s38, v5")
    a("v_mul_u32_u24 v5, 288, v5")
    a("v_and_b32 v6, 3, v3")
    a("v_lshl_add_u32 v5, v6, 3, v5")
    a(f"v_add_u32 v{AR}, 16384, v5")
    a("v_and_b32 v6, 1, v4")
    a("v_lshlrev_b32 v6, 7, v6")
    a(f"v_add_u32 v{AP}, v{AR}, v6")
    a(f"v_sub_u32 v{AQ}, v{AR}, v6")
    if PF2:
        a("s_lshr_b32 s49, s2, 3")
        a("s_cmp_eq_u32 s32, 0")
        a("s_cbranch_scc1 L_k2_pfa")
        a("s_cmp_eq_u32 s32, 1")
        a("s_cbranch_scc1 L_k2_pfb")
        a("s_mov_b32 s60, s16"); a("s_mov_b32 s61, s17"); a("s_mov_b32 s62, 0"); a("s_mov_b32 s63, 0x00020000")
        a("v_mov_b32 v81, 0")
        a("s_mov_b32 s65, 0")
        a("s_branch L_k2_pfgo")
        a.label("L_k2_pfa")
        a("s_mov_b32 s60, s16"); a("s_mov_b32 s61, s17"); a("s_mov_b32 s62, s18"); a("s_mov_b32 s63, 0x00020000")
        a("s_and_b32 s50, s49, 3")
        a("s_lshl_b32 s50, s50, 5")
        a("s_add_u32 s50, s50, s34")
        a("v_and_b32 v5, 31, v2")
        a("v_add_u32 v5, s50, v5")
        a("v_mul_lo_u32 v5, v5, s46")
        a("v_lshrrev_b32 v6, 5, v2")
        a(f"v_lshl_add_u32 v81, v6, {6 if PFH else 7}, v5")
        a(f"s_mov_b32 s65, {128 if PFH else 256}")
        a("s_branch L_k2_pfgo")
        a.label("L_k2_pfb")
        a("s_mov_b32 s60, s20"); a("s_mov_b32 s61, s21"); a("s_mov_b32 s62, s22"); a("s_mov_b32 s63, 0x00020000")
        a("v_mul_u32_u24 v5, 3641, v2")
        a("v_lshrrev_b32 v5, 16, v5")
        a("v_mul_u32_u24 v6, 18, v5")
        a("v_sub_u32 v6, v2, v6")
        a("v_mul_u32_u24 v5, 18432, v5")
        a("v_lshl_add_u32 v81, v6, 7, v5")
        a("s_lshr_b32 s50, s49, 2")
        a("s_mul_i32 s50, s50, 2304")
        a("v_add_u32 v81, s50, v81")
        a("v_mov_b32 v6, 0x7ff00000")
        a("v_cmp_gt_u32 vcc, 36, v2")
        a("s_nop 1")
        a("v_cndmask_b32 v81, v6, v81, vcc")
        a(f"s_mov_b32 s65, {2*18432}")
        a.label("L_k2_pfgo")
        a(f"s_lshl_b32 s64, s65, {2 if PFH else 1}")
        for p in range(PF2 if PFH else PF2 // 2):
            a("buffer_load_dword v80, v81, s[60:63], s64 offen")
            a("s_add_u32 s64, s64, s65")
    for r in range(144):
        a(f"v_mov_b32 v{ACC+r}, 0")
    a("s_mov_b32 s40, 0")
    a("s_lshr_b32 s41, s47, 1")
    q = LdsQ(a)
    def rd_a(i, seta, st):
        q.issue(("A", i, st), f"ds_read_b128 {vr(FA+16*seta+4*i,4)}, v{AA} offset:{i*2048}")
    def rd_b(j, st, half):
        if j < 4:
            o = ((AP, 32*j), (AQ, 128 + 1152 + 32*j))[half]
        elif j < 8:
            o = ((AQ, 32*j), (AP, 1152 - 128 + 32*j))[half]
        else:
            o = ((AR, 256), (AR, 1152 + 256))[half]
        q.issue(("B", j, st), f"ds_read_b64_tr_b16 {vr(FB+4*j+2*half,2)}, v{o[0]} offset:{o[1]}")
    def advance():
        a("s_add_u32 s40, s40, 1")
        a(f"s_cmp_eq_u32 s40, {K2_R}")
        a(f"s_cselect_b32 s42, {-(K2_R-1)*K2_S}, {K2_S}")
        a("s_cselect_b32 s40, 0, s40")
        for r in (AA, AP, AQ):
            a(f"v_add_u32 v{r}, s42, v{r}")
    a("s_barrier")
    stamp(a, 1)
    for j in range(8):
        rd_b(j, 0, 0); rd_b(j, 0, 1)
        if j < 4:
            rd_a(j, 0, 0)
    advance()
    def stage(cur, st):
        for j in range(9):
            q.need([("B", j, st)] + ([("A", i, st) for i in range(4)] if j == 0 else []))
            if j == 0:
                fill = [lambda: rd_b(8, st, 0), lambda: rd_b(8, st, 1), lambda: a(f"v_add_u32 v{AR}, s42, v{AR}")]
            else:
                fill = [lambda: rd_b(j - 1, st + 1, 0), lambda: rd_b(j - 1, st + 1, 1)]
                if j <= 4:
                    fill.append(lambda: rd_a(j - 1, 1 - cur, st + 1))
            for i in range(4):
                acc = ACC + 4 * (9 * i + j)
                a(f"v_mfma_f32_16x16x32_bf16 {vr(acc,4)}, {vr(FB+4*j,4)}, {vr(FA+16*cur+4*i,4)}, {vr(acc,4)}")
                if i < len(fill):
                    fill[i]()
        advance()
    a.label("L_k2_cloop")
    a.inloop = True
    q.done = 0
    if PF2:
        a("buffer_load_dword v80, v81, s[60:63], s64 offen")
        a("s_add_u32 s64, s64, s65")
    stage(0, 0)
    a("s_barrier")
    if PF2 and PFH:
        a("buffer_load_dword v80, v81, s[60:63], s64 offen")
        a("s_add_u32 s64, s64, s65")
    stage(1, 1)
    a("s_sub_u32 s41, s41, 1")
    a("s_cmp_lg_u32 s41, 0")
    a("s_barrier")
    a("s_cbranch_scc1 L_k2_cloop")
    a.inloop = False
    a("s_waitcnt lgkmcnt(0)")
    a("s_nop 15")
    stamp(a, 2)
    a("v_and_b32 v3, 15, v2")
    a("v_lshrrev_b32 v4, 4, v2")
    a("s_lshl_b32 s38, s36, 6")
    a("v_add_u32 v3, s38, v3")
    a("v_mul_u32_u24 v3, 592, v3")
    a("v_lshl_add_u32 v3, v4, 4, v3")
    a("s_mul_i32 s38, s37, 75776")
    a("v_add_u32 v3, s38, v3")
    for i in range(4):
        for j in range(9):
            a(f"ds_write_b128 v3, {vr(ACC+4*(9*i+j),4)} offset:{i*9472+j*64}")
    a("s_waitcnt lgkmcnt(0)")
    a("s_branch L_k2_epi")
    a.label("L_k2_loader")
    if 'L' in PRIO: a("s_setprio 3")
    a("s_sub_u32 s36, s32, 4")
    VA0, VA1 = 8, 9
    VB = 10
    a("v_lshrrev_b32 v3, 3, v2")
    a("v_and_b32 v4, 7, v2")
    a("v_lshrrev_b32 v5, 4, v2")
    if not NOSWZ: a("v_xor_b32 v4, v4, v5")
    a("s_lshl_b32 s37, s36, 5")
    a("s_add_u32 s37, s37, s34")
    a("v_add_u32 v5, s37, v3")
    a("v_mul_lo_u32 v5, v5, s46")
    a(f"v_lshl_add_u32 v{VA0}, v4, 4, v5")
    if not NOSWZ: a("v_xor_b32 v4, 4, v4")
    a(f"v_lshl_add_u32 v{VA1}, v4, 4, v5")
    for p in range(5):
        a(f"v_add_u32 v3, {64*p}, v2")
        a("v_mul_u32_u24 v4, 3641, v3")
        a("v_lshrrev_b32 v4, 16, v4")
        a("v_mul_u32_u24 v5, 18, v4")
        a("v_sub_u32 v5, v3, v5")
        a("v_bfe_u32 v6, v4, 2, 1")
        a("v_bfe_u32 v7, v4, 3, 1")
        a("v_xor_b32 v6, v6, v7")
        a("v_lshlrev_b32 v6, 3, v6")
        a("v_xor_b32 v6, v5, v6")
        a("v_cmp_gt_u32 vcc, 16, v5")
        a("s_nop 1")
        if not NOSWZ: a("v_cndmask_b32 v5, v5, v6, vcc")
        a("s_lshl_b32 s37, s36, 4")
        a("v_add_u32 v4, s37, v4")
        a("v_mul_u32_u24 v4, 288, v4")
        a(f"v_lshl_add_u32 v{VB+p}, v5, 4, v4")
    if REGST:
        RS = 16
        WA = [160, 161]
        WB = [162, 163]
        a("s_lshl_b32 s38, s36, 12")
        a("v_lshlrev_b32 v3, 4, v2")
        a(f"v_add_u32 v{WA[0]}, s38, v3")
        a(f"v_add_u32 v{WA[1]}, {2*K2_S}, v{WA[0]}")
        a("s_mul_i32 s39, s36, 4608")
        a("s_add_u32 s39, s39, 16384")
        a(f"v_add_u32 v{WB[0]}, s39, v3")
        a(f"v_add_u32 v{WB[1]}, {2*K2_S}, v{WB[0]}")
        a("s_mov_b32 s43, 0")
        a("s_mov_b32 s44, 0")
        a("s_lshl_b32 s48, s46, 3")
        def loads(st):
            r = RS + 36 * st
            for qq in range(4):
                if qq == 0:
                    a("s_mov_b32 s45, s43")
                else:
                    a("s_add_u32 s45, s45, s48")
                a(f"buffer_load_dwordx4 {vr(r+4*qq,4)}, v{VA1 if qq & 1 else VA0}, s[{SA}:{SA+3}], s45 offen")
            for p in range(5):
                if p == 4:
                    a("s_mov_b64 exec, 0xffffffff")
                a(f"buffer_load_dwordx4 {vr(r+16+4*p,4)}, v{VB+p}, s[{SB}:{SB+3}], s44 offen")
            a("s_mov_b64 exec, -1")
            if not NOADV:
                a("s_add_u32 s43, s43, 128")
                a(f"s_add_u32 s44, s44, {64*288}")
        def writes(st):
            r = RS + 36 * st
            so = (st & 1) * K2_S
            for qq in range(4):
                a(f"ds_write_b128 v{WA[st>>1]}, {vr(r+4*qq,4)} offset:{so+qq*1024}")
            for p in range(5):
                if p == 4:
                    a("s_mov_b64 exec, 0xffffffff")
                a(f"ds_write_b128 v{WB[st>>1]}, {vr(r+16+4*p,4)} offset:{so+p*1024}")
            a("s_mov_b64 exec, -1")
        for st in range(4):
            loads(st)
        a("s_waitcnt vmcnt(18)")
        writes(0); writes(1)
        a("s_waitcnt lgkmcnt(0)")
        loads(0); loads(1)
        a("s_barrier")
        def full(st):
            a("s_waitcnt vmcnt(27)")
            writes(st)
            a("s_waitcnt lgkmcnt(0)")
            loads(st)
        full(2); a("s_barrier")
        full(3); a("s_barrier")
        a("s_sub_u32 s41, s47, 8")
        a("s_lshr_b32 s41, s41, 2")
        a.label("L_k2_lloop")
        for st in range(4):
            full(st)
            if st == 3:
                a("s_sub_u32 s41, s41, 1")
                a("s_cmp_lg_u32 s41, 0")
            a("s_barrier")
        a("s_cbranch_scc1 L_k2_lloop")
        for st in range(4):
            a(f"s_waitcnt vmcnt({27-9*st})")
            writes(st)
            a("s_waitcnt lgkmcnt(0)")
            a("s_barrier")
        a("s_barrier")
        a("s_barrier")
    else:
        a("s_lshl_b32 s38, s36, 12")
        a("s_mul_i32 s39, s36, 4608")
        a("s_add_u32 s39, s39, 16384")
        a("s_mov_b32 s40, 0")
        a("s_mov_b32 s43, 0")
        a("s_mov_b32 s44, 0")
        if ROT or WRAP:
            a("s_lshr_b32 s50, s34, 7")
            a(f"s_mul_i32 s50, s50, {ROT}")
            if WRAP: a(f"s_and_b32 s50, s50, {WRAP-1}")
            a("s_lshl_b32 s43, s50, 7")
            a(f"s_mul_i32 s44, s50, {64*288}")
            a("s_lshl_b32 s51, s47, 7")
            if WRAP: a(f"s_mov_b32 s51, {WRAP*128}")
        a("s_lshl_b32 s48, s46, 3")
        def issue():
            for qq in range(4):
                a(f"s_add_u32 m0, s38, {qq*1024}")
                if qq == 0:
                    a("s_mov_b32 s45, s43")
                else:
                    a("s_add_u32 s45, s45, s48")
                a(f"buffer_load_dwordx4 v{VA1 if qq & 1 else VA0}, s[{SA}:{SA+3}], s45 offen lds")
            for p in range(5):
                a(f"s_add_u32 m0, s39, {p*1024}")
                if p == 4:
                    a("s_mov_b64 exec, 0xffffffff")
                else:
                    a("s_nop 0")
                a(f"buffer_load_dwordx4 v{VB+p}, s[{SB}:{SB+3}], s44 offen lds")
            a("s_mov_b64 exec, -1")
            if not NOADV:
                a("s_add_u32 s43, s43, 128")
                a(f"s_add_u32 s44, s44, {64*288}")
                if ROT or WRAP:
                    a("s_cmp_eq_u32 s43, s51")
                    a("s_cselect_b32 s43, 0, s43")
                    a("s_cselect_b32 s44, 0, s44")
            a("s_add_u32 s40, s40, 1")
            a(f"s_cmp_eq_u32 s40, {K2_R}")
            a(f"s_cselect_b32 s42, {-(K2_R-1)*K2_S}, {K2_S}")
            a("s_cselect_b32 s40, 0, s40")
            a("s_add_u32 s38, s38, s42")
            a("s_add_u32 s39, s39, s42")
        if EAGER:
            for st in range(4):
                issue()
            a("s_waitcnt vmcnt(18)")
            a("s_barrier")
            a("s_waitcnt vmcnt(9)")
            a("s_barrier")
            issue(); issue()
            a("s_waitcnt vmcnt(18)")
            a("s_barrier")
            a("s_sub_u32 s41, s47, 6")
            a.label("L_k2_lloop")
            issue()
            a("s_sub_u32 s41, s41, 1")
            a("s_cmp_lg_u32 s41, 0")
            a("s_waitcnt vmcnt(18)")
            a("s_barrier")
            a("s_cbranch_scc1 L_k2_lloop")
            a("s_waitcnt vmcnt(9)")
            a("s_barrier")
            a("s_waitcnt vmcnt(0)")
            a("s_barrier")
            a("s_barrier")
            a("s_barrier")
        else:
            for st in range(3):
                issue()
            a("s_waitcnt vmcnt(9)")
            a("s_barrier")
            a("s_sub_u32 s41, s47, 3")
            if LPROF:
                a("s_mov_b32 s84, 0"); a("s_mov_b32 s85, 0"); a("s_mov_b32 s86, 0")
            a.label("L_k2_lloop")
            if LPROF:
                a("s_memtime s[70:71]"); a("s_waitcnt lgkmcnt(0)")
            issue()
            if LPROF:
                a("s_memtime s[72:73]"); a("s_waitcnt lgkmcnt(0)")
            a("s_waitcnt vmcnt(9)")
            if LPROF:
                a("s_memtime s[74:75]"); a("s_waitcnt lgkmcnt(0)")
            a("s_barrier")
            if LPROF:
                a("s_memtime s[76:77]"); a("s_waitcnt lgkmcnt(0)")
                a("s_sub_u32 s78, s72, s70"); a("s_add_u32 s84, s84, s78")
                a("s_sub_u32 s78, s74, s72"); a("s_add_u32 s85, s85, s78")
                a("s_sub_u32 s78, s76, s74"); a("s_add_u32 s86, s86, s78")
            a("s_sub_u32 s41, s41, 1")
            a("s_cmp_lg_u32 s41, 0")
            a("s_cbranch_scc1 L_k2_lloop")
            if LPROF:
                for k in range(3):
                    a("s_lshl_b32 s93, s32, 5")
                    a("s_lshl_b32 s94, s2, 8")
                    a("s_add_u32 s93, s93, s94")
                    a(f"s_add_u32 s93, s93, {(1+k)*4}")
                    a(f"v_mov_b32 v254, s{84+k}")
                    a("v_mov_b32 v255, s93")
                    a("buffer_store_dword v254, v255, s[80:83], 0 offen")
            a("s_waitcnt vmcnt(0)")
            a("s_barrier")
            a("s_barrier")
            a("s_barrier")

    a.label("L_k2_epi")
    a("s_load_dwordx2 s[4:5], s[0:1], 0")
    a("s_load_dwordx4 s[8:11], s[0:1], 72")
    a("s_barrier")
    stamp(a, 3)
    a("s_mov_b32 s38, 58255")
    a("s_lshl_b32 s49, s33, 5")
    a("v_mov_b32 v7, 0x3fffffff")
    def publish(bf):
        for it in range(7):
            b = 8 + 12 * (it % 4)
            a(f"v_add_u32 v{b}, {it*512}, v0")
            a(f"v_mul_lo_u32 v{b+1}, v{b}, s38")
            a(f"v_lshrrev_b32 v{b+1}, 21, v{b+1}")
            a(f"v_mul_u32_u24 v{b+2}, 36, v{b+1}")
            a(f"v_sub_u32 v{b+2}, v{b}, v{b+2}")
            a(f"v_add_u32 v{b+3}, 32, v{b+1}")
            a(f"v_cmp_gt_u32 vcc, s49, v{b+1}")
            a("s_nop 1")
            a(f"v_cndmask_b32 v{b+1}, v{b+3}, v{b+1}, vcc")
            a(f"v_mul_u32_u24 v{b+3}, 592, v{b+1}")
            a(f"v_lshl_add_u32 v{b+3}, v{b+2}, 4, v{b+3}")
            a(f"ds_read_b128 {vr(b+4,4)}, v{b+3}")
            a(f"v_add_u32 v{b+3}, 75776, v{b+3}")
            a(f"ds_read_b128 {vr(b+8,4)}, v{b+3}")
            a(f"v_add_u32 v{b+1}, s34, v{b+1}")
            a(f"v_mul_u32_u24 v{b+1}, 576, v{b+1}")
            a(f"v_lshl_add_u32 v{b+1}, v{b+2}, 2, v{b+1}")
            a(f"v_add_u32 v{b+1}, s35, v{b+1}")
            if it == 6:
                a(f"v_cmp_gt_u32 vcc, 3456, v{b}")
                a("s_nop 1")
                a(f"v_cndmask_b32 v{b+1}, v7, v{b+1}, vcc")
            a(f"v_lshlrev_b32 v{b+1}, {1 if bf else 2}, v{b+1}")
            if it in (3, 6):
                n = 4 if it == 3 else 3
                for k in range(n):
                    bb = 8 + 12 * k
                    a(f"s_waitcnt lgkmcnt({2*(n-1-k)})")
                    for e in range(4):
                        a(f"v_add_f32 v{bb+4+e}, v{bb+4+e}, v{bb+8+e}")
                    if bf:
                        a(f"v_cvt_pk_bf16_f32 v{bb+4}, v{bb+4}, v{bb+5}")
                        a(f"v_cvt_pk_bf16_f32 v{bb+5}, v{bb+6}, v{bb+7}")
                        a(f"buffer_store_dwordx2 {vr(bb+4,2)}, v{bb+1}, s[{SO}:{SO+3}], 0 offen sc1")
                    else:
                        a(f"buffer_store_dwordx4 {vr(bb+4,4)}, v{bb+1}, s[{SO}:{SO+3}], 0 offen sc1")
                a("s_nop 1")
    a("s_cmp_ge_u32 s33, 2")
    a("s_cbranch_scc1 L_k2_pubf")
    publish(True)
    a("s_branch L_k2_pubd")
    a.label("L_k2_pubf")
    publish(False)
    a.label("L_k2_pubd")
    a("s_waitcnt vmcnt(0) lgkmcnt(0)")
    a("s_barrier")
    stamp(a, 4)
    srd(a, 52, 4, 5, LY.SZ)
    srd(a, 56, 8, 9, 576 * 2)
    srd(a, 60, 10, 11, LY.SZ)
    srd(a, 64, 12, 13, 64 * 128, LY.FLG)
    srd(a, 68, 12, 13, 4 * LY.PSZ, LY.P0)
    a("s_lshr_b32 s39, s34, 5")
    a("s_lshr_b32 s40, s2, 3")
    a("s_and_b32 s40, s40, 3")
    a("s_add_u32 s39, s39, s40")
    a("s_lshl_b32 s39, s39, 7")
    a("v_mov_b32 v200, 1")
    a("s_lshl_b32 s40, s33, 2")
    a("s_add_u32 s40, s40, s39")
    a("v_mov_b32 v201, s40")
    a("v_mov_b32 v202, s39")
    a("s_cmp_lg_u32 s32, 0")
    a("s_cbranch_scc1 L_k2_nosig")
    a("s_mov_b64 exec, 1")
    a("buffer_store_dword v200, v201, s[64:67], 0 offen sc1")
    a("s_mov_b64 exec, -1")
    a.label("L_k2_nosig")
    FI = 8
    for it in range(3):
        b = FI + 40 * it
        a(f"v_add_u32 v{b}, {it*512}, v0")
        a(f"v_mul_lo_u32 v{b+1}, v{b}, s38")
        a(f"v_lshrrev_b32 v{b+1}, 21, v{b+1}")
        a(f"v_mul_u32_u24 v{b+2}, 36, v{b+1}")
        a(f"v_sub_u32 v{b+2}, v{b}, v{b+2}")
        a(f"v_add_u32 v{b+1}, s49, v{b+1}")
        a(f"v_mul_u32_u24 v{b+3}, 592, v{b+1}")
        a(f"v_lshl_add_u32 v{b+3}, v{b+2}, 4, v{b+3}")
        a(f"v_add_u32 v{b+1}, s34, v{b+1}")
        a(f"v_mul_u32_u24 v{b+1}, 576, v{b+1}")
        a(f"v_lshl_add_u32 v{b+1}, v{b+2}, 2, v{b+1}")
        a(f"v_add_u32 v{b+1}, s35, v{b+1}")
        if it == 2:
            a(f"v_cmp_gt_u32 vcc, 1152, v{b}")
            a("s_nop 1")
            a(f"v_cndmask_b32 v{b+1}, v7, v{b+1}, vcc")
            a(f"v_mov_b32 v{b+4}, 0")
            a(f"v_cndmask_b32 v{b+3}, v{b+4}, v{b+3}, vcc")
        a(f"v_lshlrev_b32 v{b+4}, 1, v{b+1}")
        a(f"v_lshlrev_b32 v{b+5}, 2, v{b+1}")
        a(f"v_lshlrev_b32 v{b+2}, 3, v{b+2}")
        a("s_lshl_b32 s40, s35, 1")
        a(f"buffer_load_dwordx2 {vr(b+6,2)}, v{b+4}, s[52:55], 0 offen")
        a(f"buffer_load_dwordx2 {vr(b+8,2)}, v{b+2}, s[56:59], s40 offen")
        a(f"ds_read_b128 {vr(b+12,4)}, v{b+3}")
        a(f"v_add_u32 v{b+3}, 75776, v{b+3}")
        a(f"ds_read_b128 {vr(b+16,4)}, v{b+3}")
    a("s_cmp_lg_u32 s32, 0")
    a("s_cbranch_scc1 L_k2_wait")
    a("s_mov_b64 exec, 1")
    a.label("L_k2_poll")
    a("buffer_load_dwordx4 v[204:207], v202, s[64:67], 0 offen sc1")
    a("s_waitcnt vmcnt(0)")
    a("v_and_b32 v204, v204, v205")
    a("v_and_b32 v206, v206, v207")
    a("v_and_b32 v204, v204, v206")
    a("s_nop 0")
    a("v_readfirstlane_b32 s40, v204")
    a("s_cmp_eq_u32 s40, 1")
    a("s_cbranch_scc1 L_k2_polldone")
    a("s_sleep 1")
    a("s_branch L_k2_poll")
    a.label("L_k2_polldone")
    a("s_mov_b64 exec, -1")
    a.label("L_k2_wait")
    a("s_barrier")
    stamp(a, 5)
    for it in range(3):
        b = FI + 40 * it
        for p in range(2):
            a(f"s_mov_b32 s39, {p*LY.PSZ}")
            a(f"buffer_load_dwordx2 {vr(b+20+4*p,2)}, v{b+4}, s[68:71], s39 offen sc1")
        for p in range(2, 4):
            a(f"s_mov_b32 s39, {p*LY.PSZ}")
            a(f"buffer_load_dwordx4 {vr(b+20+4*p,4)}, v{b+5}, s[68:71], s39 offen sc1")
    a("s_mov_b32 s14, 0xffff0000")
    a("s_mov_b32 s15, 0xbfb8aa3b")
    a("s_waitcnt lgkmcnt(0)")
    for it in range(3):
        b = FI + 40 * it
        for e in range(4):
            a(f"v_add_f32 v{b+12+e}, v{b+12+e}, v{b+16+e}")
    def rpair(r0, r1, t):
        a(f"v_cvt_pk_bf16_f32 v{t}, v{r0}, v{r1}")
        a(f"v_lshlrev_b32 v{r0}, 16, v{t}")
        a(f"v_and_b32 v{r1}, s14, v{t}")
    for it in range(3):
        b = FI + 40 * it
        a(f"s_waitcnt vmcnt({8-4*it})")
        SRE, SIM, ML, MH = b + 20, b + 24, b + 28, b + 32
        for S in (SRE, SIM):
            a(f"v_and_b32 v{S+3}, s14, v{S+1}")
            a(f"v_lshlrev_b32 v{S+2}, 16, v{S+1}")
            a(f"v_and_b32 v{S+1}, s14, v{S}")
            a(f"v_lshlrev_b32 v{S}, 16, v{S}")
        for p in range(4):
            l = a.newlabel("own")
            a(f"s_cmp_lg_u32 s33, {p}")
            a(f"s_cbranch_scc1 {l}")
            for e in range(4):
                a(f"v_mov_b32 v{b+20+4*p+e}, v{b+12+e}")
            a.label(l)
        X, BB = b + 12, b + 16
        for e in range(2):
            a(f"v_lshlrev_b32 v{X+2*e}, 16, v{b+6+e}")
            a(f"v_and_b32 v{X+2*e+1}, s14, v{b+6+e}")
            a(f"v_lshlrev_b32 v{BB+2*e}, 16, v{b+8+e}")
            a(f"v_and_b32 v{BB+2*e+1}, s14, v{b+8+e}")
        T0, T1 = b + 36, b + 37
        for e in range(0, 4, 2):
            rpair(SRE+e, SRE+e+1, T0)
            rpair(SIM+e, SIM+e+1, T1)
            for k in range(2):
                a(f"v_sub_f32 v{SRE+e+k}, v{SRE+e+k}, v{SIM+e+k}")
                a(f"v_add_f32 v{ML+e+k}, v{ML+e+k}, v{MH+e+k}")
            rpair(SRE+e, SRE+e+1, T0)
            rpair(ML+e, ML+e+1, T1)
            for k in range(2):
                a(f"v_add_f32 v{ML+e+k}, v{ML+e+k}, v{BB+e+k}")
            rpair(ML+e, ML+e+1, T1)
            for k in range(2):
                a(f"v_mul_f32 v{b+38+k}, s15, v{ML+e+k}")
                a(f"v_exp_f32 v{b+38+k}, v{b+38+k}")
            a("s_nop 0")
            for k in range(2):
                a(f"v_add_f32 v{b+38+k}, 1.0, v{b+38+k}")
                a(f"v_rcp_f32 v{b+38+k}, v{b+38+k}")
            a("s_nop 0")
            for k in range(2):
                a(f"v_mul_f32 v{ML+e+k}, v{ML+e+k}, v{b+38+k}")
            rpair(ML+e, ML+e+1, T1)
            for k in range(2):
                a(f"v_mul_f32 v{SRE+e+k}, v{SRE+e+k}, v{ML+e+k}")
            rpair(SRE+e, SRE+e+1, T0)
            for k in range(2):
                a(f"v_add_f32 v{SRE+e+k}, v{SRE+e+k}, v{X+e+k}")
            a(f"v_cvt_pk_bf16_f32 v{b+6+e//2}, v{SRE+e}, v{SRE+e+1}")
        a(f"buffer_store_dwordx2 {vr(b+6,2)}, v{b+4}, s[60:63], 0 offen")
    stamp(a, 6)
    a.label("L_k2_done")
    a("s_endpgm")
    return kernel_desc(name, 256)

def gen_k3(a):
    name = "final_kernel"
    kernel_header(a, name)
    a("s_cmp_ge_u32 s2, 576")
    a("s_cbranch_scc1 L_k3_done")
    a("s_load_dwordx2 s[4:5], s[0:1], 0")
    a("s_load_dwordx4 s[8:11], s[0:1], 72")
    a("s_load_dwordx2 s[12:13], s[0:1], 96")
    a("s_lshl_b32 s3, s2, 8")
    a("v_add_u32 v1, s3, v0")
    a("s_mov_b32 s3, 59652324")
    a("v_mul_hi_u32 v2, v1, s3")
    a("v_mul_u32_u24 v2, 72, v2")
    a("v_sub_u32 v2, v1, v2")
    a("v_lshlrev_b32 v2, 4, v2")
    a("v_lshlrev_b32 v3, 4, v1")
    a("v_lshlrev_b32 v4, 5, v1")
    a("s_waitcnt lgkmcnt(0)")
    srd(a, 16, 4, 5, LY.SZ)
    srd(a, 20, 8, 9, 576 * 2)
    srd(a, 24, 10, 11, LY.SZ)
    srd(a, 28, 12, 13, 4 * LY.PSZ, LY.P0)
    a("buffer_load_dwordx4 v[8:11], v3, s[16:19], 0 offen")
    a("buffer_load_dwordx4 v[12:15], v2, s[20:23], 0 offen")
    for p in range(4):
        a(f"s_mov_b32 s3, {p*LY.PSZ}")
        a(f"buffer_load_dwordx4 {vr(16+8*p,4)}, v4, s[28:31], s3 offen")
        a(f"buffer_load_dwordx4 {vr(20+8*p,4)}, v4, s[28:31], s3 offen offset:16")
    a("s_mov_b32 s14, 0xffff0000")
    a("s_mov_b32 s15, 0xbfb8aa3b")
    a("s_waitcnt vmcnt(0)")
    X, BB = 48, 56
    for e in range(4):
        a(f"v_lshlrev_b32 v{X+2*e}, 16, v{8+e}")
        a(f"v_and_b32 v{X+2*e+1}, s14, v{8+e}")
        a(f"v_lshlrev_b32 v{BB+2*e}, 16, v{12+e}")
        a(f"v_and_b32 v{BB+2*e+1}, s14, v{12+e}")
    def rpair(r0, r1, t):
        a(f"v_cvt_pk_bf16_f32 v{t}, v{r0}, v{r1}")
        a(f"v_lshlrev_b32 v{r0}, 16, v{t}")
        a(f"v_and_b32 v{r1}, s14, v{t}")
    SRE, SIM, ML, MH = 16, 24, 32, 40
    for e in range(0, 8, 2):
        rpair(SRE+e, SRE+e+1, 64)
        rpair(SIM+e, SIM+e+1, 65)
        for k in range(2):
            a(f"v_sub_f32 v{SRE+e+k}, v{SRE+e+k}, v{SIM+e+k}")
            a(f"v_add_f32 v{ML+e+k}, v{ML+e+k}, v{MH+e+k}")
        rpair(SRE+e, SRE+e+1, 64)
        rpair(ML+e, ML+e+1, 65)
        for k in range(2):
            a(f"v_add_f32 v{ML+e+k}, v{ML+e+k}, v{BB+e+k}")
        rpair(ML+e, ML+e+1, 65)
        for k in range(2):
            a(f"v_mul_f32 v{66+k}, s15, v{ML+e+k}")
            a(f"v_exp_f32 v{66+k}, v{66+k}")
        a("s_nop 0")
        for k in range(2):
            a(f"v_add_f32 v{66+k}, 1.0, v{66+k}")
            a(f"v_rcp_f32 v{66+k}, v{66+k}")
        a("s_nop 0")
        for k in range(2):
            a(f"v_mul_f32 v{ML+e+k}, v{ML+e+k}, v{66+k}")
        rpair(ML+e, ML+e+1, 65)
        for k in range(2):
            a(f"v_mul_f32 v{SRE+e+k}, v{SRE+e+k}, v{ML+e+k}")
        rpair(SRE+e, SRE+e+1, 64)
        for k in range(2):
            a(f"v_add_f32 v{SRE+e+k}, v{SRE+e+k}, v{X+e+k}")
        a(f"v_cvt_pk_bf16_f32 v{8+e//2}, v{SRE+e}, v{SRE+e+1}")
    a("buffer_store_dwordx4 v[8:11], v3, s[24:27], 0 offen")
    a.label("L_k3_done")
    a("s_endpgm")
    return kernel_desc(name, 72)

def main():
    a = Asm()
    hdr = open(f"cdna_kernels/{NAME}.s.ref").read().split("; Override launch")[0]
    descs = [gen_ln(a), gen_k1(a), gen_k2(a)]
    out = hdr
    out += "; @launch kernel=ln_kernel grid=(256,1,1) block=(256,1,1) lds=0\n"
    out += f"; @launch kernel=gemm1_kernel grid=(256,1,1) block=(512,1,1) lds={K1_LDS}\n"
    out += f"; @launch kernel=gemm2_kernel grid=(256,1,1) block=(512,1,1) lds={max(K2_S*K2_R, 2*75776)}\n"
    out += '.amdgcn_target "amdgcn-amd-amdhsa--gfx950"\n'
    out += "\n".join(a.lines) + "\n"
    out += "\n".join(descs)
    dst = sys.argv[1] if len(sys.argv) > 1 else f"cdna_kernels/{NAME}.s"
    open(dst, "w").write(out)
    print("wrote", dst, len(out))

main()
```

```python
import sys, re, os
NOADV = int(os.environ.get('NOADV', '0'))
NOCOMP = int(os.environ.get('NOCOMP', '0'))
NOLOAD = int(os.environ.get('NOLOAD', '0'))
NOSTORE = int(os.environ.get('NOSTORE', '0'))
STAMP = int(os.environ.get('STAMP', '0'))
PF2 = int(os.environ.get('PF2', '6'))
ROT = int(os.environ.get('ROT', '0'))
PFH = int(os.environ.get('PFH', '0'))
PRIO = os.environ.get('PRIO', '')
REGST = int(os.environ.get('REGST', '0'))
LPROF = int(os.environ.get('LPROF', '0'))
WRAP = int(os.environ.get('WRAP', '0'))
NOSWZ = int(os.environ.get('NOSWZ', '0'))
EAGER = int(os.environ.get('EAGER', '0'))
import layout as LY

NAME = "recurrent_scan__spectral_fnet__mixer_channel_mlp__prompt"

class Asm:
    def __init__(self):
        self.lines = []
        self.uid = 0
        self.inloop = False
    def __call__(self, s):
        if NOCOMP and (s.startswith("v_mfma") or s.startswith("ds_read_b64_tr") or (s.startswith("ds_read_b128") and self.inloop)):
            return
        if NOLOAD and s.endswith(" lds"):
            return
        if NOSTORE and s.startswith("buffer_store_dwordx4") and "s[24:27]" in s and "v3," not in s:
            return
        m = re.match(r"s_cselect_b32 (s\d+), (-?\d+), (-?\d+)$", s)
        if m and not (-16 <= int(m.group(2)) <= 64) and not (-16 <= int(m.group(3)) <= 64):
            self.lines.append(f"    s_mov_b32 {m.group(1)}, {m.group(3)}")
            self.lines.append(f"    s_cselect_b32 {m.group(1)}, {m.group(2)}, {m.group(1)}")
            return
        self.lines.append("    " + s)
    def label(self, l):
        self.lines.append(l + ":")
    def raw(self, s):
        self.lines.append(s)
    def c(self, s):
        self.lines.append("    ; " + s)
    def newlabel(self, p):
        self.uid += 1
        return f"L_{p}_{self.uid}"

def vr(b, n=1):
    return f"v{b}" if n == 1 else f"v[{b}:{b+n-1}]"
def sr(b, n=1):
    return f"s{b}" if n == 1 else f"s[{b}:{b+n-1}]"

def srd(a, d, base_lo, base_hi, nbytes, off=0):
    if off:
        a(f"s_add_u32 s{d}, s{base_lo}, {off}")
        a(f"s_addc_u32 s{d+1}, s{base_hi}, 0")
    else:
        a(f"s_mov_b32 s{d}, s{base_lo}")
        a(f"s_mov_b32 s{d+1}, s{base_hi}")
    a(f"s_mov_b32 s{d+2}, {nbytes}")
    a(f"s_mov_b32 s{d+3}, 0x00020000")

def stamp_init(a, koff=0):
    if not STAMP: return
    a("s_load_dwordx2 s[80:81], s[0:1], 96")
    a("s_waitcnt lgkmcnt(0)")
    a(f"s_add_u32 s80, s80, {56*1024*1024 + koff}")
    a("s_addc_u32 s81, s81, 0")
    a("s_mov_b32 s82, 65536")
    a("s_mov_b32 s83, 0x00020000")
def stamp(a, slot):
    if not STAMP: return
    a("s_memrealtime s[92:93]")
    a("s_waitcnt lgkmcnt(0)")
    a("s_lshl_b32 s93, s32, 5")
    a("s_lshl_b32 s94, s2, 8")
    a("s_add_u32 s93, s93, s94")
    a(f"s_add_u32 s93, s93, {slot*4}")
    a("v_mov_b32 v254, s92")
    a("v_mov_b32 v255, s93")
    a("buffer_store_dword v254, v255, s[80:83], 0 offen")

def kernel_header(a, name):
    a.raw(".text")
    a.raw(f".globl {name}")
    a.raw(".p2align 8")
    a.raw(f".type {name},@function")
    a.label(name)

def kernel_desc(name, vgpr, sgpr=96):
    acc = (vgpr + 3) // 4 * 4
    return f""".section .rodata,"a"
.p2align 6
.amdhsa_kernel {name}
  .amdhsa_next_free_vgpr {vgpr}
  .amdhsa_next_free_sgpr {sgpr}
  .amdhsa_accum_offset {acc}
  .amdhsa_group_segment_fixed_size 0
  .amdhsa_kernarg_size 104
  .amdhsa_user_sgpr_count 2
  .amdhsa_user_sgpr_kernarg_segment_ptr 1
  .amdhsa_system_sgpr_workgroup_id_x 1
.end_amdhsa_kernel
"""

class LdsQ:
    def __init__(self, a):
        self.a = a
        self.q = []
        self.done = 0
    def issue(self, tag, text):
        self.a(text)
        self.q.append(tag)
    def need(self, tags):
        idx = -1
        for t in tags:
            for p in range(len(self.q) - 1, -1, -1):
                if self.q[p] == t:
                    idx = max(idx, p)
                    break
            else:
                raise Exception(f"tag {t} never issued")
        if idx < self.done:
            return
        n = len(self.q) - 1 - idx
        n = min(n, 15)
        self.a(f"s_waitcnt lgkmcnt({n})")
        self.done = len(self.q) - n

def gen_ln(a):
    name = "ln_kernel"
    kernel_header(a, name)
    a("s_cmp_ge_u32 s2, 256")
    a("s_cbranch_scc1 L_ln_done")
    a("s_load_dwordx2 s[4:5], s[0:1], 0")
    a("s_load_dwordx2 s[6:7], s[0:1], 96")
    a("v_lshrrev_b32 v1, 5, v0")
    a("s_lshl_b32 s3, s2, 3")
    a("v_add_u32 v1, s3, v1")
    a("v_and_b32 v2, 31, v0")
    a("v_mul_u32_u24 v1, 1152, v1")
    a("v_lshl_add_u32 v1, v2, 2, v1")
    a("s_waitcnt lgkmcnt(0)")
    srd(a, 8, 4, 5, LY.SZ)
    srd(a, 12, 6, 7, 2 * LY.SZ)
    srd(a, 20, 6, 7, 64 * 128, LY.FLG)
    a("s_lshl_b32 s3, s2, 8")
    a("v_add_u32 v3, s3, v0")
    a("v_mov_b32 v4, 0")
    a("buffer_store_byte v4, v3, s[20:23], 0 offen")
    P = 10
    F = 20
    for j in range(9):
        a(f"buffer_load_dword v{P+j}, v1, s[8:11], 0 offen offset:{j*128}")
    a("s_mov_b32 s16, 0xffff0000")
    a("s_mov_b32 s17, 0x3ae38e39")
    a("s_mov_b32 s18, 0x3727c5ac")
    a("s_waitcnt vmcnt(0)")
    for j in range(9):
        a(f"v_lshlrev_b32 v{F+2*j}, 16, v{P+j}")
        a(f"v_and_b32 v{F+2*j+1}, s16, v{P+j}")
    S, T, M, D, R, Q, E = 40, 41, 42, 43, 44, 45, 46
    G = 50
    def reduce32(v):
        for sh in (8, 4, 2, 1):
            a("s_nop 1")
            a(f"v_add_f32_dpp v{v}, v{v}, v{v} row_ror:{sh} row_mask:0xf bank_mask:0xf")
        a(f"ds_swizzle_b32 v{T}, v{v} offset:0x401F")
        a("s_waitcnt lgkmcnt(0)")
        a(f"v_add_f32 v{v}, v{v}, v{T}")
    def rbf(v):
        a(f"v_cvt_pk_bf16_f32 v{v}, v{v}, v{v}")
        a(f"v_lshlrev_b32 v{v}, 16, v{v}")
    def ln(outoff):
        a(f"v_add_f32 v{S}, v{F}, v{F+1}")
        for i in range(2, 18):
            a(f"v_add_f32 v{S}, v{S}, v{F+i}")
        reduce32(S)
        a(f"v_mul_f32 v{M}, s17, v{S}")
        for i in range(18):
            a(f"v_sub_f32 v{G+i}, v{F+i}, v{M}")
        a(f"v_mul_f32 v{S}, v{G}, v{G}")
        for i in range(1, 18):
            a(f"v_fmac_f32 v{S}, v{G+i}, v{G+i}")
        reduce32(S)
        a(f"v_mul_f32 v{D}, s17, v{S}")
        rbf(D)
        a(f"v_add_f32 v{D}, s18, v{D}")
        rbf(D)
        a(f"v_sqrt_f32 v{D}, v{D}")
        a("s_nop 0")
        rbf(D)
        rbf(M)
        a(f"v_rcp_f32 v{R}, v{D}")
        for i in range(18):
            a(f"v_sub_f32 v{G+i}, v{F+i}, v{M}")
        for j in range(9):
            a(f"v_cvt_pk_bf16_f32 v{P+j}, v{G+2*j}, v{G+2*j+1}")
            a(f"v_lshlrev_b32 v{G+2*j}, 16, v{P+j}")
            a(f"v_and_b32 v{G+2*j+1}, s16, v{P+j}")
        for i in range(18):
            a(f"v_mul_f32 v{Q}, v{G+i}, v{R}")
            a(f"v_fma_f32 v{E}, -v{Q}, v{D}, v{G+i}")
            a(f"v_fma_f32 v{F+i}, v{E}, v{R}, v{Q}")
        for j in range(9):
            a(f"v_cvt_pk_bf16_f32 v{P+j}, v{F+2*j}, v{F+2*j+1}")
            a(f"v_lshlrev_b32 v{F+2*j}, 16, v{P+j}")
            a(f"v_and_b32 v{F+2*j+1}, s16, v{P+j}")
        a(f"s_mov_b32 s19, {outoff}")
        for j in range(9):
            a(f"buffer_store_dword v{P+j}, v1, s[12:15], s19 offen offset:{j*128}")
    ln(LY.XN)
    a("s_nop 1")
    ln(LY.Y)
    a.label("L_ln_done")
    a("s_endpgm")
    return kernel_desc(name, 72)

K1_AS = 32768
K1_BS = 12288
K1_B0 = 3 * K1_AS
K1_LDS = K1_B0 + 5 * K1_BS
K1_N = 18
def gen_k1(a):
    name = "gemm1_kernel"
    kernel_header(a, name)
    a("s_cmp_ge_u32 s2, 256")
    a("s_cbranch_scc1 L_k1_done")
    a("s_cmp_ge_u32 s2, 240")
    a("s_cbranch_scc1 L_k1_copy")
    stamp_init(a)
    a("s_load_dwordx4 s[4:7], s[0:1], 24")
    a("s_load_dwordx4 s[8:11], s[0:1], 48")
    a("s_load_dwordx2 s[12:13], s[0:1], 96")
    a("v_lshrrev_b32 v1, 6, v0")
    a("v_and_b32 v2, 63, v0")
    a("s_and_b32 s33, s2, 7")
    a("s_lshr_b32 s34, s2, 3")
    a("s_mul_i32 s33, s33, 30")
    a("s_add_u32 s34, s34, s33")
    a("s_and_b32 s33, s34, 7")
    a("s_lshr_b32 s34, s34, 3")
    a("v_readfirstlane_b32 s32, v1")
    a("s_lshl_b32 s33, s33, 8")
    a("s_waitcnt lgkmcnt(0)")
    a("s_cmp_ge_u32 s34, 24")
    a("s_cbranch_scc1 L_k1_nt")
    gen_k1_path(a, False)
    a.label("L_k1_nt")
    gen_k1_path(a, True)
    a.label("L_k1_copy")
    a("s_load_dwordx2 s[8:9], s[0:1], 64")
    a("s_load_dwordx2 s[12:13], s[0:1], 96")
    a("s_sub_u32 s33, s2, 240")
    a(f"s_mul_i32 s33, s33, {288*72}")
    a("v_add_u32 v1, s33, v0")
    a("s_waitcnt lgkmcnt(0)")
    srd(a, 16, 8, 9, 4608 * 1152)
    srd(a, 20, 12, 13, 4608 * 1152, LY.W2R)
    a("s_mov_b32 s34, 59652324")
    a("s_mov_b32 s41, 5")
    a.label("L_k1_copy_loop")
    for u in range(8):
        b = 8 + 8 * u
        a(f"v_add_u32 v{b}, {u*512}, v1")
        a(f"v_lshlrev_b32 v{b+1}, 4, v{b}")
        a(f"buffer_load_dwordx4 {vr(b+4,4)}, v{b+1}, s[16:19], 0 offen")
        a(f"v_mul_hi_u32 v{b+1}, v{b}, s34")
        a(f"v_mul_u32_u24 v{b+2}, 72, v{b+1}")
        a(f"v_sub_u32 v{b+2}, v{b}, v{b+2}")
        a(f"v_mul_u32_u24 v{b+3}, 3641, v{b+2}")
        a(f"v_lshrrev_b32 v{b+3}, 16, v{b+3}")
        a(f"v_mul_u32_u24 v{b}, 18, v{b+3}")
        a(f"v_sub_u32 v{b+2}, v{b+2}, v{b}")
        a(f"v_mul_u32_u24 v{b+1}, 288, v{b+1}")
        a(f"v_lshl_add_u32 v{b+1}, v{b+2}, 4, v{b+1}")
        a(f"s_mov_b32 s35, {4608*288}")
        a(f"v_mul_lo_u32 v{b+3}, v{b+3}, s35")
        a(f"v_add_u32 v{b+1}, v{b+1}, v{b+3}")
    for u in range(8):
        b = 8 + 8 * u
        a(f"s_waitcnt vmcnt({7-u+u})") if False else None
    a("s_waitcnt vmcnt(0)")
    for u in range(8):
        b = 8 + 8 * u
        a(f"buffer_store_dwordx4 {vr(b+4,4)}, v{b+1}, s[20:23], 0 offen")
    a("v_add_u32 v1, 4096, v1")
    a("s_sub_u32 s41, s41, 1")
    a("s_cmp_lg_u32 s41, 0")
    a("s_cbranch_scc1 L_k1_copy_loop")
    a("v_cmp_gt_u32 vcc, 256, v0")
    a("s_and_saveexec_b64 s[36:37], vcc")
    a("s_cbranch_execz L_k1_done")
    b = 8
    a(f"v_lshlrev_b32 v{b+1}, 4, v1")
    a(f"buffer_load_dwordx4 {vr(b+4,4)}, v{b+1}, s[16:19], 0 offen")
    a(f"v_mul_hi_u32 v{b+1}, v1, s34")
    a(f"v_mul_u32_u24 v{b+2}, 72, v{b+1}")
    a(f"v_sub_u32 v{b+2}, v1, v{b+2}")
    a(f"v_mul_u32_u24 v{b+3}, 3641, v{b+2}")
    a(f"v_lshrrev_b32 v{b+3}, 16, v{b+3}")
    a(f"v_mul_u32_u24 v{b}, 18, v{b+3}")
    a(f"v_sub_u32 v{b+2}, v{b+2}, v{b}")
    a(f"v_mul_u32_u24 v{b+1}, 288, v{b+1}")
    a(f"v_lshl_add_u32 v{b+1}, v{b+2}, 4, v{b+1}")
    a(f"s_mov_b32 s35, {4608*288}")
    a(f"v_mul_lo_u32 v{b+3}, v{b+3}, s35")
    a(f"v_add_u32 v{b+1}, v{b+1}, v{b+3}")
    a("s_waitcnt vmcnt(0)")
    a(f"buffer_store_dwordx4 {vr(b+4,4)}, v{b+1}, s[20:23], 0 offen")
    a.label("L_k1_done")
    a("s_endpgm")
    return kernel_desc(name, 256)

def gen_k1_path(a, nt):
    tg = "nt" if nt else "nn"
    SA, SB, SO, SBI = 16, 20, 24, 28
    if nt:
        srd(a, SA, 12, 13, LY.SZ, LY.XN)
        a("s_sub_u32 s34, s34, 24")
        a("s_cmp_ge_u32 s34, 3")
        a("s_cselect_b32 s20, s6, s4")
        a("s_cselect_b32 s21, s7, s5")
        a(f"s_mov_b32 s22, {576*576*2}")
        a("s_mov_b32 s23, 0x00020000")
        a(f"s_cselect_b32 s35, {LY.B}, {LY.A}")
        a("s_add_u32 s24, s12, s35")
        a("s_addc_u32 s25, s13, 0")
        a(f"s_mov_b32 s26, {LY.SZ}")
        a("s_mov_b32 s27, 0x00020000")
        a("s_cmp_ge_u32 s34, 3")
        a("s_cselect_b32 s35, 3, 0")
        a("s_sub_u32 s34, s34, s35")
        a("s_mul_i32 s34, s34, 192")
        ldo = 288
    else:
        srd(a, SA, 12, 13, LY.SZ, LY.Y)
        srd(a, SB, 8, 9, 576 * 4608 * 2)
        srd(a, SO, 12, 13, LY.HSZ, LY.H)
        srd(a, SBI, 10, 11, 4608 * 2)
        a("s_mul_i32 s34, s34, 192")
        ldo = 9216
    stamp(a, 0)
    a("s_cmp_ge_u32 s32, 4")
    a(f"s_cbranch_scc1 L_k1_{tg}_loader")
    ACC = 64
    FA = 8
    FB = 24
    AA = [[48, 49], [50, 51]]
    AB0, AB1 = 52, 53
    a("s_lshr_b32 s36, s32, 1")
    a("s_and_b32 s37, s32, 1")
    a("v_and_b32 v3, 31, v2")
    a("v_lshrrev_b32 v4, 5, v2")
    a("v_bfe_u32 v5, v2, 1, 3")
    a("v_xor_b32 v6, v4, v5")
    a("s_lshl_b32 s38, s36, 7")
    a("v_add_u32 v7, s38, v3")
    a("v_lshlrev_b32 v7, 7, v7")
    a(f"v_lshl_add_u32 v{AA[0][0]}, v6, 4, v7")
    a(f"v_xor_b32 v{AA[0][1]}, 32, v{AA[0][0]}")
    a(f"v_xor_b32 v{AA[1][0]}, 64, v{AA[0][0]}")
    a(f"v_xor_b32 v{AA[1][1]}, 96, v{AA[0][0]}")
    if nt:
        a("v_bfe_u32 v5, v2, 2, 2")
        a("v_xor_b32 v6, v4, v5")
        a("s_mul_i32 s38, s37, 96")
        a("v_add_u32 v7, s38, v3")
        a("v_lshlrev_b32 v7, 6, v7")
        a(f"v_lshl_add_u32 v{AB0}, v6, 4, v7")
        a(f"v_add_u32 v{AB0}, {K1_B0}, v{AB0}")
        a(f"v_xor_b32 v{AB1}, 32, v{AB0}")
    else:
        a("v_bfe_u32 v3, v2, 2, 2")
        a("v_lshl_add_u32 v3, v4, 3, v3")
        a("v_mul_u32_u24 v3, 384, v3")
        a("v_bfe_u32 v5, v2, 4, 1")
        a("v_lshl_add_u32 v3, v5, 5, v3")
        a("v_and_b32 v5, 3, v2")
        a("v_lshl_add_u32 v3, v5, 3, v3")
        a("s_mul_i32 s38, s37, 192")
        a(f"s_add_u32 s38, s38, {K1_B0}")
        a("v_add_u32 v3, s38, v3")
        a("v_bfe_u32 v5, v2, 3, 1")
        a("v_lshlrev_b32 v5, 6, v5")
        a(f"v_add_u32 v{AB0}, v3, v5")
        a(f"v_sub_u32 v{AB1}, v3, v5")
        a("s_cmp_eq_u32 s37, 1")
        a(f"s_cbranch_scc0 L_k1_noswap")
        a(f"v_mov_b32 v3, v{AB0}")
        a(f"v_mov_b32 v{AB0}, v{AB1}")
        a(f"v_mov_b32 v{AB1}, v3")
        a.label("L_k1_noswap")
    if nt:
        for r in range(192):
            a(f"v_mov_b32 v{ACC+r}, 0")
    else:
        a("s_mul_i32 s38, s37, 96")
        a("s_add_u32 s38, s38, s34")
        a("s_lshl_b32 s38, s38, 1")
        a("v_lshlrev_b32 v3, 3, v4")
        for j in range(3):
            for rq in range(4):
                a(f"buffer_load_dwordx2 {vr(8+2*(4*j+rq),2)}, v3, s[{SBI}:{SBI+3}], s38 offen offset:{j*64+rq*16}")
        a("s_mov_b32 s38, 0xffff0000")
        a("s_waitcnt vmcnt(0)")
        for j in range(3):
            for rq in range(4):
                src = 8 + 2 * (4 * j + rq)
                d = ACC + 16 * j + 4 * rq
                a(f"v_lshlrev_b32 v{d}, 16, v{src}")
                a(f"v_and_b32 v{d+1}, s38, v{src}")
                a(f"v_lshlrev_b32 v{d+2}, 16, v{src+1}")
                a(f"v_and_b32 v{d+3}, s38, v{src+1}")
        for i in range(1, 4):
            for r in range(48):
                a(f"v_mov_b32 v{ACC+48*i+r}, v{ACC+r}")
    a("s_mov_b32 s40, 0")
    a("s_mov_b32 s43, 0")
    a(f"s_mov_b32 s41, {K1_N//2}")
    q = LdsQ(a)
    def rd_a(i, h, kk, step):
        q.issue(("A", i, step), f"ds_read_b128 {vr(FA+4*i,4)}, v{AA[h][kk]} offset:{i*4096}")
    def rd_b(j, kk, setb, step):
        base = FB + 12 * setb + 4 * j
        if nt:
            q.issue(("B", j, step), f"ds_read_b128 {vr(base,4)}, v{AB1 if kk else AB0} offset:{j*2048}")
        else:
            for hh in range(2):
                areg = AB1 if (j & 1) else AB0
                q.issue(("B", j, step), f"ds_read_b64_tr_b16 {vr(base+2*hh,2)}, v{areg} offset:{kk*6144+hh*1536+j*64}")
    if 'C' in PRIO: a("s_setprio 3")
    a("s_barrier")
    stamp(a, 1)
    def reads_for(h, kk, setb, step, slot):
        if slot == 0:
            rd_a(0, h, kk, step); rd_b(0, kk, setb, step); rd_b(1, kk, setb, step)
        elif slot == 1:
            rd_a(1, h, kk, step); rd_b(2, kk, setb, step)
        else:
            rd_a(slot, h, kk, step)
    for sl in range(4):
        reads_for(0, 0, 0, 0, sl)
    def step(cur_set, nh, nkk, stepid):
        for i in range(4):
            q.need([("A", i, stepid)] + ([("B", j, stepid) for j in range(3)] if i == 0 else []))
            for j in range(3):
                acc = ACC + 16 * (3 * i + j)
                a(f"v_mfma_f32_32x32x16_bf16 {vr(acc,16)}, {vr(FB+12*cur_set+4*j,4)}, {vr(FA+4*i,4)}, {vr(acc,16)}")
            reads_for(nh, nkk, 1 - cur_set, stepid + 1, i)
    def adv_b():
        a("s_add_u32 s40, s40, 1")
        a("s_cmp_eq_u32 s40, 5")
        a(f"s_cselect_b32 s42, {-4*K1_BS}, {K1_BS}")
        a("s_cselect_b32 s40, 0, s40")
        for r in (AB0, AB1):
            a(f"v_add_u32 v{r}, s42, v{r}")
    def adv_a():
        a("s_add_u32 s43, s43, 1")
        a("s_cmp_eq_u32 s43, 3")
        a(f"s_cselect_b32 s42, {-2*K1_AS}, {K1_AS}")
        a("s_cselect_b32 s43, 0, s43")
        for r in (AA[0][0], AA[0][1], AA[1][0], AA[1][1]):
            a(f"v_add_u32 v{r}, s42, v{r}")
    a.label(f"L_k1_{tg}_cloop")
    a.inloop = True
    q.done = 0
    step(0, 0, 1, 0)
    adv_b()
    step(1, 1, 0, 1)
    a("s_barrier")
    step(0, 1, 1, 2)
    adv_b()
    adv_a()
    step(1, 0, 0, 3)
    a("s_sub_u32 s41, s41, 1")
    a("s_cmp_lg_u32 s41, 0")
    a("s_barrier")
    a(f"s_cbranch_scc1 L_k1_{tg}_cloop")
    a.inloop = False
    stamp(a, 2)
    a("s_waitcnt lgkmcnt(0)")
    a("s_nop 15")
    a("v_and_b32 v3, 31, v2")
    a("v_lshrrev_b32 v4, 5, v2")
    a("s_lshl_b32 s38, s36, 7")
    a("v_add_u32 v3, s38, v3")
    a("v_mul_u32_u24 v3, 400, v3")
    a("v_lshl_add_u32 v3, v4, 3, v3")
    a("s_mul_i32 s38, s37, 192")
    a("v_add_u32 v3, s38, v3")
    tmp = 8
    cnt = 0
    for i in range(4):
        for j in range(3):
            acc = ACC + 16 * (3 * i + j)
            for rq in range(4):
                t = tmp + 2 * (cnt % 16); cnt += 1
                a(f"v_cvt_pk_bf16_f32 v{t}, v{acc+4*rq}, v{acc+4*rq+1}")
                a(f"v_cvt_pk_bf16_f32 v{t+1}, v{acc+4*rq+2}, v{acc+4*rq+3}")
                a(f"ds_write_b64 v3, {vr(t,2)} offset:{i*12800+j*64+rq*16}")
    a("s_waitcnt lgkmcnt(0)")
    a(f"s_branch L_k1_{tg}_epi")
    a.label(f"L_k1_{tg}_loader")
    if 'L' in PRIO: a("s_setprio 3")
    a("s_sub_u32 s36, s32, 4")
    VA0, VA1 = 8, 9
    VB = 10
    a("v_lshrrev_b32 v3, 3, v2")
    a("v_and_b32 v4, 7, v2")
    a("v_lshrrev_b32 v5, 4, v2")
    a("v_xor_b32 v4, v4, v5")
    a("s_lshl_b32 s37, s36, 6")
    a("s_add_u32 s37, s37, s33")
    a("v_add_u32 v5, s37, v3")
    a("v_mul_u32_u24 v5, 1152, v5")
    a(f"v_lshl_add_u32 v{VA0}, v4, 4, v5")
    a("v_xor_b32 v4, 4, v4")
    a(f"v_lshl_add_u32 v{VA1}, v4, 4, v5")
    if nt:
        a("v_lshrrev_b32 v3, 2, v2")
        a("v_and_b32 v4, 3, v2")
        a("v_bfe_u32 v5, v2, 4, 2")
        a("v_xor_b32 v4, v4, v5")
        a("s_mul_i32 s37, s36, 48")
        a("s_add_u32 s37, s37, s34")
        a("v_add_u32 v5, s37, v3")
        a("v_mul_u32_u24 v5, 1152, v5")
        a(f"v_lshl_add_u32 v{VB}, v4, 4, v5")
    else:
        for p in range(3):
            a(f"v_add_u32 v3, {64*p}, v2")
            a("v_mul_u32_u24 v4, 2731, v3")
            a("v_lshrrev_b32 v4, 16, v4")
            a("v_mul_u32_u24 v5, 24, v4")
            a("v_sub_u32 v5, v3, v5")
            a("v_bfe_u32 v6, v4, 1, 1")
            a("v_lshlrev_b32 v6, 2, v6")
            a("v_xor_b32 v5, v5, v6")
            a("s_lshl_b32 s37, s36, 3")
            a("v_add_u32 v4, s37, v4")
            a("s_mov_b32 s37, 9216")
            a("v_mul_lo_u32 v4, v4, s37")
            a("v_lshl_add_u32 v4, v5, 4, v4")
            a("s_lshl_b32 s37, s34, 1")
            a(f"v_add_u32 v{VB+p}, s37, v4")
    a("s_lshl_b32 s38, s36, 13")
    a("s_mul_i32 s39, s36, 3072")
    a(f"s_add_u32 s39, s39, {K1_B0}")
    a("s_mov_b32 s40, 0")
    a("s_mov_b32 s46, 0")
    a("s_mov_b32 s43, 0")
    a("s_mov_b32 s44, 0")
    def issue_a():
        for qq in range(8):
            a(f"s_add_u32 m0, s38, {qq*1024}")
            a(f"s_add_u32 s45, s43, {qq*9216}")
            a(f"buffer_load_dwordx4 v{VA1 if qq & 1 else VA0}, s[{SA}:{SA+3}], s45 offen lds")
        if not NOADV:
            a("s_add_u32 s43, s43, 128")
        a("s_add_u32 s46, s46, 1")
        a("s_cmp_eq_u32 s46, 3")
        a(f"s_cselect_b32 s42, {-2*K1_AS}, {K1_AS}")
        a("s_cselect_b32 s46, 0, s46")
        a("s_add_u32 s38, s38, s42")
    def issue_b():
        for p in range(3):
            a(f"s_add_u32 m0, s39, {p*1024}")
            if nt:
                a(f"s_add_u32 s45, s44, {p*18432}")
                a(f"buffer_load_dwordx4 v{VB}, s[{SB}:{SB+3}], s45 offen lds")
            else:
                a("s_nop 0")
                a(f"buffer_load_dwordx4 v{VB+p}, s[{SB}:{SB+3}], s44 offen lds")
        if not NOADV:
            a(f"s_add_u32 s44, s44, {64 if nt else 32*9216}")
        a("s_add_u32 s40, s40, 1")
        a("s_cmp_eq_u32 s40, 5")
        a(f"s_cselect_b32 s42, {-4*K1_BS}, {K1_BS}")
        a("s_cselect_b32 s40, 0, s40")
        a("s_add_u32 s39, s39, s42")
    issue_a(); issue_b(); issue_b(); issue_a(); issue_b(); issue_b()
    a("s_waitcnt vmcnt(14)")
    a("s_barrier")
    stamp(a, 1)
    a("s_mov_b32 s41, 7")
    a.label(f"L_k1_{tg}_lloop")
    issue_b(); issue_a()
    a("s_waitcnt vmcnt(14)")
    a("s_barrier")
    issue_b()
    a("s_sub_u32 s41, s41, 1")
    a("s_cmp_lg_u32 s41, 0")
    a("s_waitcnt vmcnt(14)")
    a("s_barrier")
    a(f"s_cbranch_scc1 L_k1_{tg}_lloop")
    a("s_waitcnt vmcnt(3)")
    a("s_barrier")
    a("s_waitcnt vmcnt(0)")
    a("s_barrier")
    a("s_barrier")
    a("s_barrier")
    a.label(f"L_k1_{tg}_epi")
    LA = 8
    GO = 11
    BI = 16
    D = 40
    for ph in range(3):
        a(f"v_add_u32 v3, {512*ph}, v0")
        a("v_mul_u32_u24 v4, 2731, v3")
        a("v_lshrrev_b32 v4, 16, v4")
        a("v_mul_u32_u24 v5, 24, v4")
        a("v_sub_u32 v5, v3, v5")
        a("v_mul_u32_u24 v6, 400, v4")
        a(f"v_lshl_add_u32 v{LA+ph}, v5, 4, v6")
        a("v_add_u32 v4, s33, v4")
        if nt:
            a("v_lshl_add_u32 v5, v5, 3, s34")
            a("v_mul_u32_u24 v6, 7282, v5")
            a("v_lshrrev_b32 v6, 20, v6")
            a("v_mul_u32_u24 v7, 144, v6")
            a("v_sub_u32 v5, v5, v7")
            a("v_mul_u32_u24 v4, 288, v4")
            a("v_lshl_add_u32 v4, v5, 1, v4")
            a(f"s_mov_b32 s37, {2048*288}")
            a("v_mul_lo_u32 v6, v6, s37")
            a(f"v_add_u32 v{GO+ph}, v4, v6")
        else:
            a(f"s_mov_b32 s37, {ldo}")
            a("v_mul_lo_u32 v4, v4, s37")
            a("v_lshl_add_u32 v4, v5, 4, v4")
            a("s_lshl_b32 s37, s34, 1")
            a(f"v_add_u32 v{GO+ph}, s37, v4")
    a("s_mov_b32 s46, 0xffff0000")
    if not nt:
        a("v_mov_b32 v14, 0xc0135761")
        a("s_mov_b32 s48, 0xbdd2d3e7")
    a("s_barrier")
    stamp(a, 3)
    a("s_mov_b32 s37, 0")
    a("s_mov_b32 s41, 4")
    a.label(f"L_k1_{tg}_eloop")
    for ph in range(3):
        DD = D + 24 * ph
        a(f"ds_read_b128 {vr(DD,4)}, v{LA+ph}")
        a(f"v_add_u32 v{LA+ph}, 25600, v{LA+ph}")
    for ph in range(3):
        DD = D + 24 * ph
        a(f"s_waitcnt lgkmcnt({2-ph})")
        if not nt:
            X = DD + 4; T = DD + 12
            for e in range(4):
                a(f"v_lshlrev_b32 v{X+2*e}, 16, v{DD+e}")
                a(f"v_and_b32 v{X+2*e+1}, s46, v{DD+e}")
            for e in range(8):
                a(f"v_mul_f32 v{T+e}, v{X+e}, v{X+e}")
            for e in range(8):
                a(f"v_fma_f32 v{T+e}, v{T+e}, s48, v14")
            for e in range(8):
                a(f"v_mul_f32 v{T+e}, v{X+e}, v{T+e}")
            for e in range(8):
                a(f"v_exp_f32 v{T+e}, v{T+e}")
            for e in range(8):
                a(f"v_add_f32 v{T+e}, 1.0, v{T+e}")
            for e in range(8):
                a(f"v_rcp_f32 v{T+e}, v{T+e}")
            for e in range(8):
                a(f"v_mul_f32 v{X+e}, v{X+e}, v{T+e}")
            for e in range(4):
                a(f"v_cvt_pk_bf16_f32 v{DD+e}, v{X+2*e}, v{X+2*e+1}")
        a(f"buffer_store_dwordx4 {vr(DD,4)}, v{GO+ph}, s[{SO}:{SO+3}], s37 offen")
    a(f"s_add_u32 s37, s37, {64*ldo}")
    a("s_sub_u32 s41, s41, 1")
    a("s_cmp_lg_u32 s41, 0")
    a(f"s_cbranch_scc1 L_k1_{tg}_eloop")
    stamp(a, 4)
    stamp(a, 5)
    a("s_endpgm")

K2_S = 34816
K2_R = 4
def gen_k2(a):
    name = "gemm2_kernel"
    kernel_header(a, name)
    SA, SB, SO = 16, 20, 24
    a("s_cmp_ge_u32 s2, 256")
    a("s_cbranch_scc1 L_k2_done")
    stamp_init(a, 65536)
    a("s_load_dwordx4 s[4:7], s[0:1], 8")
    a("s_load_dwordx2 s[8:9], s[0:1], 64")
    a("s_load_dwordx2 s[12:13], s[0:1], 96")
    a("v_lshrrev_b32 v1, 6, v0")
    a("v_and_b32 v2, 63, v0")
    a("s_and_b32 s33, s2, 3")
    a("s_bfe_u32 s34, s2, 0x10002")
    a("s_lshr_b32 s35, s2, 3")
    a("v_readfirstlane_b32 s32, v1")
    a("s_lshr_b32 s36, s35, 2")
    a("s_lshl_b32 s34, s34, 3")
    a("s_add_u32 s34, s34, s36")
    a("s_lshl_b32 s34, s34, 7")
    a("s_and_b32 s35, s35, 3")
    a("s_mul_i32 s35, s35, 144")
    a("s_waitcnt lgkmcnt(0)")
    a("s_cmp_ge_u32 s33, 2")
    a("s_cbranch_scc1 L_k2_mlp")
    a("s_cmp_eq_u32 s33, 1")
    a("s_cselect_b32 s16, s6, s4")
    a("s_cselect_b32 s17, s7, s5")
    a(f"s_mov_b32 s18, {2048*2048*2}")
    a(f"s_cselect_b32 s36, {LY.B}, {LY.A}")
    a(f"s_mul_i32 s37, s35, {2048*2}")
    a("s_add_u32 s36, s36, s37")
    a("s_add_u32 s20, s12, s36")
    a("s_addc_u32 s21, s13, 0")
    a(f"s_mov_b32 s22, {2048*288}")
    a("s_mov_b32 s46, 4096")
    a("s_mov_b32 s47, 32")
    a("s_branch L_k2_go")
    a.label("L_k2_mlp")
    a("s_cmp_eq_u32 s33, 3")
    a(f"s_cselect_b32 s36, {LY.H + 2304*2}, {LY.H}")
    a(f"s_cselect_b32 s18, {LY.HSZ - 2304*2}, {LY.HSZ}")
    a(f"s_cselect_b32 s37, {2304*288 + LY.W2R}, {LY.W2R}")
    a(f"s_mov_b32 s22, {2304*288}")
    a("s_add_u32 s16, s12, s36")
    a("s_addc_u32 s17, s13, 0")
    a(f"s_mul_i32 s36, s35, {4608*2}")
    a("s_add_u32 s37, s37, s36")
    a("s_add_u32 s20, s12, s37")
    a("s_addc_u32 s21, s13, 0")
    a("s_mov_b32 s46, 9216")
    a("s_mov_b32 s47, 36")
    a.label("L_k2_go")
    a("s_mov_b32 s19, 0x00020000")
    a("s_mov_b32 s23, 0x00020000")
    a(f"s_mul_i32 s36, s33, {LY.PSZ}")
    a(f"s_add_u32 s36, s36, {LY.P0}")
    a("s_add_u32 s24, s12, s36")
    a("s_addc_u32 s25, s13, 0")
    a(f"s_mov_b32 s26, {LY.PSZ}")
    a("s_mov_b32 s27, 0x00020000")
    stamp(a, 0)
    a("s_cmp_ge_u32 s32, 4")
    a("s_cbranch_scc1 L_k2_loader")
    ACC = 112
    FA = 8
    FB = 40
    AA, AP, AQ, AR = 76, 77, 78, 79
    a("s_lshr_b32 s36, s32, 1")
    a("s_and_b32 s37, s32, 1")
    a("v_and_b32 v3, 15, v2")
    a("v_lshrrev_b32 v4, 4, v2")
    a("s_lshl_b32 s38, s37, 2")
    a("v_add_u32 v5, s38, v4")
    a("v_lshrrev_b32 v6, 1, v3")
    a("v_xor_b32 v5, v5, v6")
    a("s_lshl_b32 s38, s36, 6")
    a("v_add_u32 v6, s38, v3")
    a("v_lshlrev_b32 v6, 7, v6")
    a(f"v_lshl_add_u32 v{AA}, v5, 4, v6")
    a("v_lshrrev_b32 v5, 2, v3")
    a("v_lshl_add_u32 v5, v4, 3, v5")
    a("s_lshl_b32 s38, s37, 5")
    a("v_add_u32 v5, s38, v5")
    a("v_mul_u32_u24 v5, 288, v5")
    a("v_and_b32 v6, 3, v3")
    a("v_lshl_add_u32 v5, v6, 3, v5")
    a(f"v_add_u32 v{AR}, 16384, v5")
    a("v_and_b32 v6, 1, v4")
    a("v_lshlrev_b32 v6, 7, v6")
    a(f"v_add_u32 v{AP}, v{AR}, v6")
    a(f"v_sub_u32 v{AQ}, v{AR}, v6")
    if PF2:
        a("s_lshr_b32 s49, s2, 3")
        a("s_cmp_eq_u32 s32, 0")
        a("s_cbranch_scc1 L_k2_pfa")
        a("s_cmp_eq_u32 s32, 1")
        a("s_cbranch_scc1 L_k2_pfb")
        a("s_mov_b32 s60, s16"); a("s_mov_b32 s61, s17"); a("s_mov_b32 s62, 0"); a("s_mov_b32 s63, 0x00020000")
        a("v_mov_b32 v81, 0")
        a("s_mov_b32 s65, 0")
        a("s_branch L_k2_pfgo")
        a.label("L_k2_pfa")
        a("s_mov_b32 s60, s16"); a("s_mov_b32 s61, s17"); a("s_mov_b32 s62, s18"); a("s_mov_b32 s63, 0x00020000")
        a("s_and_b32 s50, s49, 3")
        a("s_lshl_b32 s50, s50, 5")
        a("s_add_u32 s50, s50, s34")
        a("v_and_b32 v5, 31, v2")
        a("v_add_u32 v5, s50, v5")
        a("v_mul_lo_u32 v5, v5, s46")
        a("v_lshrrev_b32 v6, 5, v2")
        a(f"v_lshl_add_u32 v81, v6, {6 if PFH else 7}, v5")
        a(f"s_mov_b32 s65, {128 if PFH else 256}")
        a("s_branch L_k2_pfgo")
        a.label("L_k2_pfb")
        a("s_mov_b32 s60, s20"); a("s_mov_b32 s61, s21"); a("s_mov_b32 s62, s22"); a("s_mov_b32 s63, 0x00020000")
        a("v_mul_u32_u24 v5, 3641, v2")
        a("v_lshrrev_b32 v5, 16, v5")
        a("v_mul_u32_u24 v6, 18, v5")
        a("v_sub_u32 v6, v2, v6")
        a("v_mul_u32_u24 v5, 18432, v5")
        a("v_lshl_add_u32 v81, v6, 7, v5")
        a("s_lshr_b32 s50, s49, 2")
        a("s_mul_i32 s50, s50, 2304")
        a("v_add_u32 v81, s50, v81")
        a("v_mov_b32 v6, 0x7ff00000")
        a("v_cmp_gt_u32 vcc, 36, v2")
        a("s_nop 1")
        a("v_cndmask_b32 v81, v6, v81, vcc")
        a(f"s_mov_b32 s65, {2*18432}")
        a.label("L_k2_pfgo")
        a(f"s_lshl_b32 s64, s65, {2 if PFH else 1}")
        for p in range(PF2 if PFH else PF2 // 2):
            a("buffer_load_dword v80, v81, s[60:63], s64 offen")
            a("s_add_u32 s64, s64, s65")
    for r in range(144):
        a(f"v_mov_b32 v{ACC+r}, 0")
    a("s_mov_b32 s40, 0")
    a("s_lshr_b32 s41, s47, 1")
    q = LdsQ(a)
    def rd_a(i, seta, st):
        q.issue(("A", i, st), f"ds_read_b128 {vr(FA+16*seta+4*i,4)}, v{AA} offset:{i*2048}")
    def breg(j, st):
        if EAGER and j >= 7 and (st & 1):
            return 84 + 4 * (j - 7)
        return FB + 4 * j
    def rd_b(j, st):
        if j < 4:
            o0, o1 = (AP, 32*j), (AQ, 128 + 1152 + 32*j)
        elif j < 8:
            o0, o1 = (AQ, 32*j), (AP, 1152 - 128 + 32*j)
        else:
            o0, o1 = (AR, 256), (AR, 1152 + 256)
        q.issue(("B", j, st), f"ds_read_b64_tr_b16 {vr(breg(j,st),2)}, v{o0[0]} offset:{o0[1]}")
        q.issue(("B", j, st), f"ds_read_b64_tr_b16 {vr(breg(j,st)+2,2)}, v{o1[0]} offset:{o1[1]}")
    def advance():
        a("s_add_u32 s40, s40, 1")
        a(f"s_cmp_eq_u32 s40, {K2_R}")
        a(f"s_cselect_b32 s42, {-(K2_R-1)*K2_S}, {K2_S}")
        a("s_cselect_b32 s40, 0, s40")
        for r in (AA, AP, AQ, AR):
            a(f"v_add_u32 v{r}, s42, v{r}")
    if 'C' in PRIO: a("s_setprio 3")
    a("s_barrier")
    stamp(a, 1)
    def sched(j, cur, st):
        if j < 4:
            rd_a(j, cur, st)
        if EAGER:
            if j < 7: rd_b(j, st)
            if j == 4: rd_b(7, st)
            if j == 5: rd_b(8, st)
        else:
            rd_b(j, st)
    for j in range(9):
        sched(j, 0, 0)
    advance()
    def stage(cur, st):
        for j in range(9):
            q.need([("B", j, st)] + ([("A", i, st) for i in range(4)] if j == 0 else []))
            for i in range(4):
                acc = ACC + 4 * (9 * i + j)
                a(f"v_mfma_f32_16x16x32_bf16 {vr(acc,4)}, {vr(breg(j,st),4)}, {vr(FA+16*cur+4*i,4)}, {vr(acc,4)}")
            sched(j, 1 - cur, st + 1)
        advance()
        if EAGER:
            a("s_waitcnt lgkmcnt(0)")
            q.done = len(q.q)
    a.label("L_k2_cloop")
    a.inloop = True
    q.done = 0
    if PF2:
        a("buffer_load_dword v80, v81, s[60:63], s64 offen")
        a("s_add_u32 s64, s64, s65")
    stage(0, 0)
    a("s_barrier")
    if PF2 and PFH:
        a("buffer_load_dword v80, v81, s[60:63], s64 offen")
        a("s_add_u32 s64, s64, s65")
    stage(1, 1)
    a("s_sub_u32 s41, s41, 1")
    a("s_cmp_lg_u32 s41, 0")
    a("s_barrier")
    a("s_cbranch_scc1 L_k2_cloop")
    a.inloop = False
    a("s_waitcnt lgkmcnt(0)")
    a("s_nop 15")
    stamp(a, 2)
    a("v_and_b32 v3, 15, v2")
    a("v_lshrrev_b32 v4, 4, v2")
    a("s_lshl_b32 s38, s36, 6")
    a("v_add_u32 v3, s38, v3")
    a("v_mul_u32_u24 v3, 592, v3")
    a("v_lshl_add_u32 v3, v4, 4, v3")
    a("s_mul_i32 s38, s37, 75776")
    a("v_add_u32 v3, s38, v3")
    for i in range(4):
        for j in range(9):
            a(f"ds_write_b128 v3, {vr(ACC+4*(9*i+j),4)} offset:{i*9472+j*64}")
    a("s_waitcnt lgkmcnt(0)")
    a("s_branch L_k2_epi")
    a.label("L_k2_loader")
    if 'L' in PRIO: a("s_setprio 3")
    a("s_sub_u32 s36, s32, 4")
    VA0, VA1 = 8, 9
    VB = 10
    a("v_lshrrev_b32 v3, 3, v2")
    a("v_and_b32 v4, 7, v2")
    a("v_lshrrev_b32 v5, 4, v2")
    if not NOSWZ: a("v_xor_b32 v4, v4, v5")
    a("s_lshl_b32 s37, s36, 5")
    a("s_add_u32 s37, s37, s34")
    a("v_add_u32 v5, s37, v3")
    a("v_mul_lo_u32 v5, v5, s46")
    a(f"v_lshl_add_u32 v{VA0}, v4, 4, v5")
    if not NOSWZ: a("v_xor_b32 v4, 4, v4")
    a(f"v_lshl_add_u32 v{VA1}, v4, 4, v5")
    for p in range(5):
        a(f"v_add_u32 v3, {64*p}, v2")
        a("v_mul_u32_u24 v4, 3641, v3")
        a("v_lshrrev_b32 v4, 16, v4")
        a("v_mul_u32_u24 v5, 18, v4")
        a("v_sub_u32 v5, v3, v5")
        a("v_bfe_u32 v6, v4, 2, 1")
        a("v_bfe_u32 v7, v4, 3, 1")
        a("v_xor_b32 v6, v6, v7")
        a("v_lshlrev_b32 v6, 3, v6")
        a("v_xor_b32 v6, v5, v6")
        a("v_cmp_gt_u32 vcc, 16, v5")
        a("s_nop 1")
        if not NOSWZ: a("v_cndmask_b32 v5, v5, v6, vcc")
        a("s_lshl_b32 s37, s36, 4")
        a("v_add_u32 v4, s37, v4")
        a("v_mul_u32_u24 v4, 288, v4")
        a(f"v_lshl_add_u32 v{VB+p}, v5, 4, v4")
    if REGST:
        RS = 16
        WA = [160, 161]
        WB = [162, 163]
        a("s_lshl_b32 s38, s36, 12")
        a("v_lshlrev_b32 v3, 4, v2")
        a(f"v_add_u32 v{WA[0]}, s38, v3")
        a(f"v_add_u32 v{WA[1]}, {2*K2_S}, v{WA[0]}")
        a("s_mul_i32 s39, s36, 4608")
        a("s_add_u32 s39, s39, 16384")
        a(f"v_add_u32 v{WB[0]}, s39, v3")
        a(f"v_add_u32 v{WB[1]}, {2*K2_S}, v{WB[0]}")
        a("s_mov_b32 s43, 0")
        a("s_mov_b32 s44, 0")
        a("s_lshl_b32 s48, s46, 3")
        def loads(st):
            r = RS + 36 * st
            for qq in range(4):
                if qq == 0:
                    a("s_mov_b32 s45, s43")
                else:
                    a("s_add_u32 s45, s45, s48")
                a(f"buffer_load_dwordx4 {vr(r+4*qq,4)}, v{VA1 if qq & 1 else VA0}, s[{SA}:{SA+3}], s45 offen")
            for p in range(5):
                if p == 4:
                    a("s_mov_b64 exec, 0xffffffff")
                a(f"buffer_load_dwordx4 {vr(r+16+4*p,4)}, v{VB+p}, s[{SB}:{SB+3}], s44 offen")
            a("s_mov_b64 exec, -1")
            if not NOADV:
                a("s_add_u32 s43, s43, 128")
                a(f"s_add_u32 s44, s44, {64*288}")
        def writes(st):
            r = RS + 36 * st
            so = (st & 1) * K2_S
            for qq in range(4):
                a(f"ds_write_b128 v{WA[st>>1]}, {vr(r+4*qq,4)} offset:{so+qq*1024}")
            for p in range(5):
                if p == 4:
                    a("s_mov_b64 exec, 0xffffffff")
                a(f"ds_write_b128 v{WB[st>>1]}, {vr(r+16+4*p,4)} offset:{so+p*1024}")
            a("s_mov_b64 exec, -1")
        for st in range(4):
            loads(st)
        a("s_waitcnt vmcnt(18)")
        writes(0); writes(1)
        a("s_waitcnt lgkmcnt(0)")
        loads(0); loads(1)
        a("s_barrier")
        def full(st):
            a("s_waitcnt vmcnt(27)")
            writes(st)
            a("s_waitcnt lgkmcnt(0)")
            loads(st)
        full(2); a("s_barrier")
        full(3); a("s_barrier")
        a("s_sub_u32 s41, s47, 8")
        a("s_lshr_b32 s41, s41, 2")
        a.label("L_k2_lloop")
        for st in range(4):
            full(st)
            if st == 3:
                a("s_sub_u32 s41, s41, 1")
                a("s_cmp_lg_u32 s41, 0")
            a("s_barrier")
        a("s_cbranch_scc1 L_k2_lloop")
        for st in range(4):
            a(f"s_waitcnt vmcnt({27-9*st})")
            writes(st)
            a("s_waitcnt lgkmcnt(0)")
            a("s_barrier")
        a("s_barrier")
        a("s_barrier")
    else:
        a("s_lshl_b32 s38, s36, 12")
        a("s_mul_i32 s39, s36, 4608")
        a("s_add_u32 s39, s39, 16384")
        a("s_mov_b32 s40, 0")
        a("s_mov_b32 s43, 0")
        a("s_mov_b32 s44, 0")
        if ROT or WRAP:
            a("s_lshr_b32 s50, s34, 7")
            a(f"s_mul_i32 s50, s50, {ROT}")
            if WRAP: a(f"s_and_b32 s50, s50, {WRAP-1}")
            a("s_lshl_b32 s43, s50, 7")
            a(f"s_mul_i32 s44, s50, {64*288}")
            a("s_lshl_b32 s51, s47, 7")
            if WRAP: a(f"s_mov_b32 s51, {WRAP*128}")
        a("s_lshl_b32 s48, s46, 3")
        def issue():
            for qq in range(4):
                a(f"s_add_u32 m0, s38, {qq*1024}")
                if qq == 0:
                    a("s_mov_b32 s45, s43")
                else:
                    a("s_add_u32 s45, s45, s48")
                a(f"buffer_load_dwordx4 v{VA1 if qq & 1 else VA0}, s[{SA}:{SA+3}], s45 offen lds")
            for p in range(5):
                a(f"s_add_u32 m0, s39, {p*1024}")
                if p == 4:
                    a("s_mov_b64 exec, 0xffffffff")
                else:
                    a("s_nop 0")
                a(f"buffer_load_dwordx4 v{VB+p}, s[{SB}:{SB+3}], s44 offen lds")
            a("s_mov_b64 exec, -1")
            if not NOADV:
                a("s_add_u32 s43, s43, 128")
                a(f"s_add_u32 s44, s44, {64*288}")
                if ROT or WRAP:
                    a("s_cmp_eq_u32 s43, s51")
                    a("s_cselect_b32 s43, 0, s43")
                    a("s_cselect_b32 s44, 0, s44")
            a("s_add_u32 s40, s40, 1")
            a(f"s_cmp_eq_u32 s40, {K2_R}")
            a(f"s_cselect_b32 s42, {-(K2_R-1)*K2_S}, {K2_S}")
            a("s_cselect_b32 s40, 0, s40")
            a("s_add_u32 s38, s38, s42")
            a("s_add_u32 s39, s39, s42")
        if EAGER:
            for st in range(4):
                issue()
            a("s_waitcnt vmcnt(18)")
            a("s_barrier")
            a("s_waitcnt vmcnt(9)")
            a("s_barrier")
            issue(); issue()
            a("s_waitcnt vmcnt(18)")
            a("s_barrier")
            a("s_sub_u32 s41, s47, 6")
            a.label("L_k2_lloop")
            issue()
            a("s_sub_u32 s41, s41, 1")
            a("s_cmp_lg_u32 s41, 0")
            a("s_waitcnt vmcnt(18)")
            a("s_barrier")
            a("s_cbranch_scc1 L_k2_lloop")
            a("s_waitcnt vmcnt(9)")
            a("s_barrier")
            a("s_waitcnt vmcnt(0)")
            a("s_barrier")
            a("s_barrier")
            a("s_barrier")
        else:
            for st in range(3):
                issue()
            a("s_waitcnt vmcnt(9)")
            a("s_barrier")
            a("s_sub_u32 s41, s47, 3")
            if LPROF:
                a("s_mov_b32 s84, 0"); a("s_mov_b32 s85, 0"); a("s_mov_b32 s86, 0")
            a.label("L_k2_lloop")
            if LPROF:
                a("s_memtime s[70:71]"); a("s_waitcnt lgkmcnt(0)")
            issue()
            if LPROF:
                a("s_memtime s[72:73]"); a("s_waitcnt lgkmcnt(0)")
            a("s_waitcnt vmcnt(9)")
            if LPROF:
                a("s_memtime s[74:75]"); a("s_waitcnt lgkmcnt(0)")
            a("s_barrier")
            if LPROF:
                a("s_memtime s[76:77]"); a("s_waitcnt lgkmcnt(0)")
                a("s_sub_u32 s78, s72, s70"); a("s_add_u32 s84, s84, s78")
                a("s_sub_u32 s78, s74, s72"); a("s_add_u32 s85, s85, s78")
                a("s_sub_u32 s78, s76, s74"); a("s_add_u32 s86, s86, s78")
            a("s_sub_u32 s41, s41, 1")
            a("s_cmp_lg_u32 s41, 0")
            a("s_cbranch_scc1 L_k2_lloop")
            if LPROF:
                for k in range(3):
                    a("s_lshl_b32 s93, s32, 5")
                    a("s_lshl_b32 s94, s2, 8")
                    a("s_add_u32 s93, s93, s94")
                    a(f"s_add_u32 s93, s93, {(1+k)*4}")
                    a(f"v_mov_b32 v254, s{84+k}")
                    a("v_mov_b32 v255, s93")
                    a("buffer_store_dword v254, v255, s[80:83], 0 offen")
            a("s_waitcnt vmcnt(0)")
            a("s_barrier")
            a("s_barrier")
            a("s_barrier")

    a.label("L_k2_epi")
    a("s_load_dwordx2 s[4:5], s[0:1], 0")
    a("s_load_dwordx4 s[8:11], s[0:1], 72")
    a("s_barrier")
    stamp(a, 3)
    a("s_mov_b32 s38, 58255")
    a("s_lshl_b32 s49, s33, 5")
    a("v_mov_b32 v7, 0x3fffffff")
    def publish(bf):
        for it in range(7):
            b = 8 + 12 * (it % 4)
            a(f"v_add_u32 v{b}, {it*512}, v0")
            a(f"v_mul_lo_u32 v{b+1}, v{b}, s38")
            a(f"v_lshrrev_b32 v{b+1}, 21, v{b+1}")
            a(f"v_mul_u32_u24 v{b+2}, 36, v{b+1}")
            a(f"v_sub_u32 v{b+2}, v{b}, v{b+2}")
            a(f"v_add_u32 v{b+3}, 32, v{b+1}")
            a(f"v_cmp_gt_u32 vcc, s49, v{b+1}")
            a("s_nop 1")
            a(f"v_cndmask_b32 v{b+1}, v{b+3}, v{b+1}, vcc")
            a(f"v_mul_u32_u24 v{b+3}, 592, v{b+1}")
            a(f"v_lshl_add_u32 v{b+3}, v{b+2}, 4, v{b+3}")
            a(f"ds_read_b128 {vr(b+4,4)}, v{b+3}")
            a(f"v_add_u32 v{b+3}, 75776, v{b+3}")
            a(f"ds_read_b128 {vr(b+8,4)}, v{b+3}")
            a(f"v_add_u32 v{b+1}, s34, v{b+1}")
            a(f"v_mul_u32_u24 v{b+1}, 576, v{b+1}")
            a(f"v_lshl_add_u32 v{b+1}, v{b+2}, 2, v{b+1}")
            a(f"v_add_u32 v{b+1}, s35, v{b+1}")
            if it == 6:
                a(f"v_cmp_gt_u32 vcc, 3456, v{b}")
                a("s_nop 1")
                a(f"v_cndmask_b32 v{b+1}, v7, v{b+1}, vcc")
            a(f"v_lshlrev_b32 v{b+1}, {1 if bf else 2}, v{b+1}")
            if it in (3, 6):
                n = 4 if it == 3 else 3
                for k in range(n):
                    bb = 8 + 12 * k
                    a(f"s_waitcnt lgkmcnt({2*(n-1-k)})")
                    for e in range(4):
                        a(f"v_add_f32 v{bb+4+e}, v{bb+4+e}, v{bb+8+e}")
                    if bf:
                        a(f"v_cvt_pk_bf16_f32 v{bb+4}, v{bb+4}, v{bb+5}")
                        a(f"v_cvt_pk_bf16_f32 v{bb+5}, v{bb+6}, v{bb+7}")
                        a(f"buffer_store_dwordx2 {vr(bb+4,2)}, v{bb+1}, s[{SO}:{SO+3}], 0 offen sc1")
                    else:
                        a(f"buffer_store_dwordx4 {vr(bb+4,4)}, v{bb+1}, s[{SO}:{SO+3}], 0 offen sc1")
                a("s_nop 1")
    a("s_cmp_ge_u32 s33, 2")
    a("s_cbranch_scc1 L_k2_pubf")
    publish(True)
    a("s_branch L_k2_pubd")
    a.label("L_k2_pubf")
    publish(False)
    a.label("L_k2_pubd")
    a("s_waitcnt vmcnt(0) lgkmcnt(0)")
    a("s_barrier")
    stamp(a, 4)
    srd(a, 52, 4, 5, LY.SZ)
    srd(a, 56, 8, 9, 576 * 2)
    srd(a, 60, 10, 11, LY.SZ)
    srd(a, 64, 12, 13, 64 * 128, LY.FLG)
    srd(a, 68, 12, 13, 4 * LY.PSZ, LY.P0)
    a("s_lshr_b32 s39, s34, 5")
    a("s_lshr_b32 s40, s2, 3")
    a("s_and_b32 s40, s40, 3")
    a("s_add_u32 s39, s39, s40")
    a("s_lshl_b32 s39, s39, 7")
    a("v_mov_b32 v200, 1")
    a("s_lshl_b32 s40, s33, 2")
    a("s_add_u32 s40, s40, s39")
    a("v_mov_b32 v201, s40")
    a("v_mov_b32 v202, s39")
    a("s_cmp_lg_u32 s32, 0")
    a("s_cbranch_scc1 L_k2_nosig")
    a("s_mov_b64 exec, 1")
    a("buffer_store_dword v200, v201, s[64:67], 0 offen sc1")
    a("s_mov_b64 exec, -1")
    a.label("L_k2_nosig")
    FI = 8
    for it in range(3):
        b = FI + 40 * it
        a(f"v_add_u32 v{b}, {it*512}, v0")
        a(f"v_mul_lo_u32 v{b+1}, v{b}, s38")
        a(f"v_lshrrev_b32 v{b+1}, 21, v{b+1}")
        a(f"v_mul_u32_u24 v{b+2}, 36, v{b+1}")
        a(f"v_sub_u32 v{b+2}, v{b}, v{b+2}")
        a(f"v_add_u32 v{b+1}, s49, v{b+1}")
        a(f"v_mul_u32_u24 v{b+3}, 592, v{b+1}")
        a(f"v_lshl_add_u32 v{b+3}, v{b+2}, 4, v{b+3}")
        a(f"v_add_u32 v{b+1}, s34, v{b+1}")
        a(f"v_mul_u32_u24 v{b+1}, 576, v{b+1}")
        a(f"v_lshl_add_u32 v{b+1}, v{b+2}, 2, v{b+1}")
        a(f"v_add_u32 v{b+1}, s35, v{b+1}")
        if it == 2:
            a(f"v_cmp_gt_u32 vcc, 1152, v{b}")
            a("s_nop 1")
            a(f"v_cndmask_b32 v{b+1}, v7, v{b+1}, vcc")
            a(f"v_mov_b32 v{b+4}, 0")
            a(f"v_cndmask_b32 v{b+3}, v{b+4}, v{b+3}, vcc")
        a(f"v_lshlrev_b32 v{b+4}, 1, v{b+1}")
        a(f"v_lshlrev_b32 v{b+5}, 2, v{b+1}")
        a(f"v_lshlrev_b32 v{b+2}, 3, v{b+2}")
        a("s_lshl_b32 s40, s35, 1")
        a(f"buffer_load_dwordx2 {vr(b+6,2)}, v{b+4}, s[52:55], 0 offen")
        a(f"buffer_load_dwordx2 {vr(b+8,2)}, v{b+2}, s[56:59], s40 offen")
        a(f"ds_read_b128 {vr(b+12,4)}, v{b+3}")
        a(f"v_add_u32 v{b+3}, 75776, v{b+3}")
        a(f"ds_read_b128 {vr(b+16,4)}, v{b+3}")
    a("s_cmp_lg_u32 s32, 0")
    a("s_cbranch_scc1 L_k2_wait")
    a("s_mov_b64 exec, 1")
    a.label("L_k2_poll")
    a("buffer_load_dwordx4 v[204:207], v202, s[64:67], 0 offen sc1")
    a("s_waitcnt vmcnt(0)")
    a("v_and_b32 v204, v204, v205")
    a("v_and_b32 v206, v206, v207")
    a("v_and_b32 v204, v204, v206")
    a("s_nop 0")
    a("v_readfirstlane_b32 s40, v204")
    a("s_cmp_eq_u32 s40, 1")
    a("s_cbranch_scc1 L_k2_polldone")
    a("s_sleep 1")
    a("s_branch L_k2_poll")
    a.label("L_k2_polldone")
    a("s_mov_b64 exec, -1")
    a.label("L_k2_wait")
    a("s_barrier")
    stamp(a, 5)
    for it in range(3):
        b = FI + 40 * it
        for p in range(2):
            a(f"s_mov_b32 s39, {p*LY.PSZ}")
            a(f"buffer_load_dwordx2 {vr(b+20+4*p,2)}, v{b+4}, s[68:71], s39 offen sc1")
        for p in range(2, 4):
            a(f"s_mov_b32 s39, {p*LY.PSZ}")
            a(f"buffer_load_dwordx4 {vr(b+20+4*p,4)}, v{b+5}, s[68:71], s39 offen sc1")
    a("s_mov_b32 s14, 0xffff0000")
    a("s_mov_b32 s15, 0xbfb8aa3b")
    a("s_waitcnt lgkmcnt(0)")
    for it in range(3):
        b = FI + 40 * it
        for e in range(4):
            a(f"v_add_f32 v{b+12+e}, v{b+12+e}, v{b+16+e}")
    def rpair(r0, r1, t):
        a(f"v_cvt_pk_bf16_f32 v{t}, v{r0}, v{r1}")
        a(f"v_lshlrev_b32 v{r0}, 16, v{t}")
        a(f"v_and_b32 v{r1}, s14, v{t}")
    for it in range(3):
        b = FI + 40 * it
        a(f"s_waitcnt vmcnt({8-4*it})")
        SRE, SIM, ML, MH = b + 20, b + 24, b + 28, b + 32
        for S in (SRE, SIM):
            a(f"v_and_b32 v{S+3}, s14, v{S+1}")
            a(f"v_lshlrev_b32 v{S+2}, 16, v{S+1}")
            a(f"v_and_b32 v{S+1}, s14, v{S}")
            a(f"v_lshlrev_b32 v{S}, 16, v{S}")
        for p in range(4):
            l = a.newlabel("own")
            a(f"s_cmp_lg_u32 s33, {p}")
            a(f"s_cbranch_scc1 {l}")
            for e in range(4):
                a(f"v_mov_b32 v{b+20+4*p+e}, v{b+12+e}")
            a.label(l)
        X, BB = b + 12, b + 16
        for e in range(2):
            a(f"v_lshlrev_b32 v{X+2*e}, 16, v{b+6+e}")
            a(f"v_and_b32 v{X+2*e+1}, s14, v{b+6+e}")
            a(f"v_lshlrev_b32 v{BB+2*e}, 16, v{b+8+e}")
            a(f"v_and_b32 v{BB+2*e+1}, s14, v{b+8+e}")
        T0, T1 = b + 36, b + 37
        for e in range(0, 4, 2):
            rpair(SRE+e, SRE+e+1, T0)
            rpair(SIM+e, SIM+e+1, T1)
            for k in range(2):
                a(f"v_sub_f32 v{SRE+e+k}, v{SRE+e+k}, v{SIM+e+k}")
                a(f"v_add_f32 v{ML+e+k}, v{ML+e+k}, v{MH+e+k}")
            rpair(SRE+e, SRE+e+1, T0)
            rpair(ML+e, ML+e+1, T1)
            for k in range(2):
                a(f"v_add_f32 v{ML+e+k}, v{ML+e+k}, v{BB+e+k}")
            rpair(ML+e, ML+e+1, T1)
            for k in range(2):
                a(f"v_mul_f32 v{b+38+k}, s15, v{ML+e+k}")
                a(f"v_exp_f32 v{b+38+k}, v{b+38+k}")
            a("s_nop 0")
            for k in range(2):
                a(f"v_add_f32 v{b+38+k}, 1.0, v{b+38+k}")
                a(f"v_rcp_f32 v{b+38+k}, v{b+38+k}")
            a("s_nop 0")
            for k in range(2):
                a(f"v_mul_f32 v{ML+e+k}, v{ML+e+k}, v{b+38+k}")
            rpair(ML+e, ML+e+1, T1)
            for k in range(2):
                a(f"v_mul_f32 v{SRE+e+k}, v{SRE+e+k}, v{ML+e+k}")
            rpair(SRE+e, SRE+e+1, T0)
            for k in range(2):
                a(f"v_add_f32 v{SRE+e+k}, v{SRE+e+k}, v{X+e+k}")
            a(f"v_cvt_pk_bf16_f32 v{b+6+e//2}, v{SRE+e}, v{SRE+e+1}")
        a(f"buffer_store_dwordx2 {vr(b+6,2)}, v{b+4}, s[60:63], 0 offen")
    stamp(a, 6)
    a.label("L_k2_done")
    a("s_endpgm")
    return kernel_desc(name, 256)

def gen_k3(a):
    name = "final_kernel"
    kernel_header(a, name)
    a("s_cmp_ge_u32 s2, 576")
    a("s_cbranch_scc1 L_k3_done")
    a("s_load_dwordx2 s[4:5], s[0:1], 0")
    a("s_load_dwordx4 s[8:11], s[0:1], 72")
    a("s_load_dwordx2 s[12:13], s[0:1], 96")
    a("s_lshl_b32 s3, s2, 8")
    a("v_add_u32 v1, s3, v0")
    a("s_mov_b32 s3, 59652324")
    a("v_mul_hi_u32 v2, v1, s3")
    a("v_mul_u32_u24 v2, 72, v2")
    a("v_sub_u32 v2, v1, v2")
    a("v_lshlrev_b32 v2, 4, v2")
    a("v_lshlrev_b32 v3, 4, v1")
    a("v_lshlrev_b32 v4, 5, v1")
    a("s_waitcnt lgkmcnt(0)")
    srd(a, 16, 4, 5, LY.SZ)
    srd(a, 20, 8, 9, 576 * 2)
    srd(a, 24, 10, 11, LY.SZ)
    srd(a, 28, 12, 13, 4 * LY.PSZ, LY.P0)
    a("buffer_load_dwordx4 v[8:11], v3, s[16:19], 0 offen")
    a("buffer_load_dwordx4 v[12:15], v2, s[20:23], 0 offen")
    for p in range(4):
        a(f"s_mov_b32 s3, {p*LY.PSZ}")
        a(f"buffer_load_dwordx4 {vr(16+8*p,4)}, v4, s[28:31], s3 offen")
        a(f"buffer_load_dwordx4 {vr(20+8*p,4)}, v4, s[28:31], s3 offen offset:16")
    a("s_mov_b32 s14, 0xffff0000")
    a("s_mov_b32 s15, 0xbfb8aa3b")
    a("s_waitcnt vmcnt(0)")
    X, BB = 48, 56
    for e in range(4):
        a(f"v_lshlrev_b32 v{X+2*e}, 16, v{8+e}")
        a(f"v_and_b32 v{X+2*e+1}, s14, v{8+e}")
        a(f"v_lshlrev_b32 v{BB+2*e}, 16, v{12+e}")
        a(f"v_and_b32 v{BB+2*e+1}, s14, v{12+e}")
    def rpair(r0, r1, t):
        a(f"v_cvt_pk_bf16_f32 v{t}, v{r0}, v{r1}")
        a(f"v_lshlrev_b32 v{r0}, 16, v{t}")
        a(f"v_and_b32 v{r1}, s14, v{t}")
    SRE, SIM, ML, MH = 16, 24, 32, 40
    for e in range(0, 8, 2):
        rpair(SRE+e, SRE+e+1, 64)
        rpair(SIM+e, SIM+e+1, 65)
        for k in range(2):
            a(f"v_sub_f32 v{SRE+e+k}, v{SRE+e+k}, v{SIM+e+k}")
            a(f"v_add_f32 v{ML+e+k}, v{ML+e+k}, v{MH+e+k}")
        rpair(SRE+e, SRE+e+1, 64)
        rpair(ML+e, ML+e+1, 65)
        for k in range(2):
            a(f"v_add_f32 v{ML+e+k}, v{ML+e+k}, v{BB+e+k}")
        rpair(ML+e, ML+e+1, 65)
        for k in range(2):
            a(f"v_mul_f32 v{66+k}, s15, v{ML+e+k}")
            a(f"v_exp_f32 v{66+k}, v{66+k}")
        a("s_nop 0")
        for k in range(2):
            a(f"v_add_f32 v{66+k}, 1.0, v{66+k}")
            a(f"v_rcp_f32 v{66+k}, v{66+k}")
        a("s_nop 0")
        for k in range(2):
            a(f"v_mul_f32 v{ML+e+k}, v{ML+e+k}, v{66+k}")
        rpair(ML+e, ML+e+1, 65)
        for k in range(2):
            a(f"v_mul_f32 v{SRE+e+k}, v{SRE+e+k}, v{ML+e+k}")
        rpair(SRE+e, SRE+e+1, 64)
        for k in range(2):
            a(f"v_add_f32 v{SRE+e+k}, v{SRE+e+k}, v{X+e+k}")
        a(f"v_cvt_pk_bf16_f32 v{8+e//2}, v{SRE+e}, v{SRE+e+1}")
    a("buffer_store_dwordx4 v[8:11], v3, s[24:27], 0 offen")
    a.label("L_k3_done")
    a("s_endpgm")
    return kernel_desc(name, 72)

def main():
    a = Asm()
    hdr = open(f"cdna_kernels/{NAME}.s.ref").read().split("; Override launch")[0]
    descs = [gen_ln(a), gen_k1(a), gen_k2(a)]
    out = hdr
    out += "; @launch kernel=ln_kernel grid=(256,1,1) block=(256,1,1) lds=0\n"
    out += f"; @launch kernel=gemm1_kernel grid=(256,1,1) block=(512,1,1) lds={K1_LDS}\n"
    out += f"; @launch kernel=gemm2_kernel grid=(256,1,1) block=(512,1,1) lds={max(K2_S*K2_R, 2*75776)}\n"
    out += '.amdgcn_target "amdgcn-amd-amdhsa--gfx950"\n'
    out += "\n".join(a.lines) + "\n"
    out += "\n".join(descs)
    dst = sys.argv[1] if len(sys.argv) > 1 else f"cdna_kernels/{NAME}.s"
    open(dst, "w").write(out)
    print("wrote", dst, len(out))

main()
```
